```python
import torch

def _softmax(x, axis=-1):
    return torch.softmax(x, dim=axis)

def _gelu(x):
    return torch.nn.functional.gelu(x, approximate='tanh')

def _silu(x):
    return torch.nn.functional.silu(x)

def _sigmoid(x):
    return torch.sigmoid(x)

def _layernorm(x, axis=-1, eps=1e-05):
    m = x.mean(dim=axis, keepdim=True)
    v = x.var(dim=axis, keepdim=True, unbiased=False)
    return (x - m) / torch.sqrt(v + eps)

def _scatter_add(tgt, idx, src, axis=0):
    return tgt.clone().index_add_(axis, idx, src)

def _segment_sum(src, seg, n):
    out = torch.zeros((n,) + src.shape[1:], dtype=src.dtype)
    return out.index_add_(0, seg, src)

def _pad(x, pw):
    flat = tuple((v for pair in reversed(pw) for v in pair))
    return torch.nn.functional.pad(x, flat)
kernel_name = 'adaLN_cond__mha_block_cached__dense_activation_silu__decode'

def setup_inputs():

    _w = lambda a: (lambda t: t.to(torch.bfloat16) if t.is_floating_point() else t)(torch.as_tensor(a))

    def _A_setup():
        B, Sq, D = (8, 1, 640)
        H, Sk, Dh = (32, 4096, 128)
        return {'x': _w((lambda *s: torch.randn(*s, dtype=torch.bfloat16) * 0.1)(B, Sq, D)), 'k_cache': _w((lambda *s: torch.randn(*s, dtype=torch.bfloat16) * 0.8)(B, H, Sk, Dh)), 'v_cache': _w((lambda *s: torch.randn(*s, dtype=torch.bfloat16) * 3.2)(B, H, Sk, Dh)), 'wq': _w((lambda *s: torch.randn(*s, dtype=torch.bfloat16) * 0.8)(D, H * Dh) * D ** (-0.5)), 'wo': _w((lambda *s: torch.randn(*s, dtype=torch.bfloat16) * 3.2)(H * Dh, D) * (H * Dh) ** (-0.5))}
    _A_in = _A_setup()

    def _B_setup():
        B, S, D, F = (8, 1, 640, 1728)
        return {'x': _w((lambda *s: torch.randn(*s, dtype=torch.bfloat16) * 0.1)(B, S, D)), 'w1': _w((lambda *s: torch.randn(*s, dtype=torch.bfloat16) * 3.2)(D, F) * D ** (-0.5)), 'w2': _w((lambda *s: torch.randn(*s, dtype=torch.bfloat16) * 3.2)(F, D) * F ** (-0.5))}
    _B_in = _B_setup()
    return {'A_x': _A_in['x'], 'A_k_cache': _A_in['k_cache'], 'A_v_cache': _A_in['v_cache'], 'A_wq': _A_in['wq'], 'A_wo': _A_in['wo'], 'B_x': _B_in['x'], 'B_w1': _B_in['w1'], 'B_w2': _B_in['w2'], 'c': _w((lambda *s: torch.randn(*s, dtype=torch.bfloat16) * 0.2)(8, 640) * 8.0), 'w_mod': _w((lambda *s: torch.randn(*s, dtype=torch.bfloat16) * 0.2)(640, 6 * 640) * 640 ** (-0.5) * 8.0)}

def reference(A_x, A_k_cache, A_v_cache, A_wq, A_wo, B_x, B_w1, B_w2, c, w_mod):

    def _A_ref(x, k_cache, v_cache, wq, wo):
        B, Sq, D = x.shape
        H, Dh = (32, 128)
        q = (lambda x, *d: x.permute(*d))((x @ wq).reshape(B, Sq, H, Dh), 0, 2, 1, 3)
        scores = torch.einsum('bhqd,bhkd->bhqk', q, k_cache) * Dh ** (-0.5)
        p = _softmax(scores, axis=-1)
        o = torch.einsum('bhqk,bhkd->bhqd', p, v_cache)
        return (lambda x, *d: x.permute(*d))(o, 0, 2, 1, 3).reshape(B, Sq, H * Dh) @ wo

    def _B_ref(x, w1, w2):
        h = torch.einsum('bsd,df->bsf', x, w1)
        h = _silu(h)
        out = torch.einsum('bsf,fd->bsd', h, w2)
        return out
    x = A_x
    mod = (_silu(c) @ w_mod).reshape(c.shape[0], 6, 1, -1)
    sa, ca, ga, sb, cb, gb = (mod[:, 0].clone(), mod[:, 1].clone(), mod[:, 2].clone(), mod[:, 3].clone(), mod[:, 4].clone(), mod[:, 5].clone())
    h = _layernorm(x, axis=-1) * (1 + ca) + sa
    x = x + ga * _A_ref(h, A_k_cache, A_v_cache, A_wq, A_wo)
    h = _layernorm(x, axis=-1) * (1 + cb) + sb
    x = x + gb * _B_ref(h, B_w1, B_w2)
    return x
```

```python
import sys, struct
KNAME = "adaLN_cond__mha_block_cached__dense_activation_silu__decode_kernel"
OPT = set(sys.argv[2:])
DEBUG_STAMPS = "stamp" in OPT

WS_MOD=0x0
WS_Q=0x10000
WS_O=0x20000
WS_X1P=0x30000
WS_H1=0x48000
WS_RDY=0x50000
WS_SIZE=0x100000
WS_STAMP=0x80000
LDS_RED=0
LDS_Q=8192
LDS_ST=8448
LDS_PART=8704
LDS_ML=LDS_PART+4096
LDS_PRE=LDS_ML+64
LDS_SIZE=LDS_PRE+4*48*256
C1 = 0.08838834764831845*1.4426950408889634
def f2u(f): return struct.unpack('<I',struct.pack('<f',f))[0]

class G:
    def __init__(s): s.L=[]; s.n=0
    def e(s,x): s.L.append("  "+x)
    def lab(s,x): s.L.append(x+":")
    def newlab(s,p="L"): s.n+=1; return f"{p}_{s.n}"
    def c(s,x): s.L.append("  ; "+x)
g=G(); e=g.e
def stamp(idx):
    if not DEBUG_STAMPS: return
    e("s_memrealtime s[92:93]"); e("s_waitcnt lgkmcnt(0)"); e(f"s_mov_b32 s{80+idx}, s92")
def poll_tail(lp,sl):
    ld=g.newlab("Lpd"); e(f"s_cbranch_vccz {ld}"); e(f"s_sleep {sl}")
    e("s_add_u32 s30, s30, 1"); e("s_cmp_gt_u32 s30, 400000"); e(f"s_cbranch_scc0 {lp}"); g.lab(ld)
def vr(b,n=4): return f"v[{b}:{b+n-1}]"
def sr(b,n=4): return f"s[{b}:{b+n-1}]"
def srd(base, ptr, size):
    e(f"s_mov_b32 s{base}, s{ptr}"); e(f"s_mov_b32 s{base+1}, s{ptr+1}"); e(f"s_mov_b32 s{base+2}, {size}"); e(f"s_mov_b32 s{base+3}, 0x20000")

hdr = open('adaLN_cond__mha_block_cached__dense_activation_silu__decode.s.ref').read().split('\n')
for ln in hdr:
    if ln.startswith('; @launch'): break
    g.L.append(ln)
g.L.append(f"; @launch grid=(256,1,1) block=(768,1,1) lds={LDS_SIZE}")
g.L.append('.amdgcn_target "amdgcn-amd-amdhsa--gfx950"')
g.L.append(".text"); g.L.append(f".globl {KNAME}"); g.L.append(".p2align 8"); g.L.append(f".type {KNAME},@function"); g.lab(KNAME)

e("s_cmp_ge_u32 s2, 256"); e("s_cbranch_scc1 L_EXIT")
e("s_load_dwordx16 s[8:23], s[0:1], 0")
e("s_load_dwordx4 s[24:27], s[0:1], 64")
e("s_load_dwordx2 s[28:29], s[0:1], 80")
e("s_load_dwordx4 s[4:7], s[0:1], 88")
e("v_lshrrev_b32 v1, 6, v0")
e("v_and_b32 v0, 63, v0")
e("v_readfirstlane_b32 s3, v1")
e("s_lshr_b32 s34, s2, 5")
e("s_and_b32 s35, s2, 31")
e("v_lshrrev_b32 v1, 4, v0")
e("v_and_b32 v2, 15, v0")
e("s_mov_b32 s79, s3")
if DEBUG_STAMPS:
    for k in range(12): e(f"s_mov_b32 s{80+k}, 0")
    e("s_waitcnt lgkmcnt(0)")
    stamp(0)
e("s_cmp_ge_u32 s3, 4")
e("s_cbranch_scc1 L_STREAM")

g.c("================ service waves")
e("s_setprio 3")
e("v_and_b32 v3, 7, v2")
e("v_lshrrev_b32 v4, 3, v2")
e("v_lshlrev_b32 v5, 6, v4"); e("v_lshl_add_u32 v5, v1, 4, v5")
e("v_lshlrev_b32 v4, 9, v4"); e("v_lshl_add_u32 v4, v3, 6, v4"); e("v_lshl_add_u32 v4, v1, 4, v4")
e("v_mov_b32 v39, v5")
e("s_mov_b32 s60, 0x05040100"); e("s_mov_b32 s61, 0x07060302"); e("s_mov_b32 s30, 0")
e("s_waitcnt lgkmcnt(0)")
srd(36,6,WS_SIZE); srd(40,4,256)

WL=88; WA=40; AF=8; ACC=20; T=136
VAK=39

def wload(npairs, rowstride, ldbase, pair0_sreg_code, guards={}):
    for t in range(npairs):
        skip=None
        if t in guards:
            skip=g.newlab("Lskw"); guards[t](skip)
        pair0_sreg_code(t)
        for hb in range(2):
            for i in range(8):
                e(f"buffer_load_dword v{ldbase+(2*t+hb)*8+(i>>1)+4*(i&1)}, v5, s[44:47], s56 offen")
                if not (hb==1 and i==7): e(f"s_add_u32 s56, s56, {rowstride if i<7 else rowstride*25}")
        if skip: g.lab(skip)
def g_w2(skip): e("s_cmp_ge_u32 s3, 2"); e(f"s_cbranch_scc1 {skip}")
def g_w3(skip): e("s_cmp_eq_u32 s3, 3"); e(f"s_cbranch_scc1 {skip}")
def pair_w4t(rowstride):
    def f(t): e(f"s_add_u32 s56, s3, {4*t}"); e(f"s_mul_i32 s56, s56, {64*rowstride}")
    return f
def wperm(nblk, ldbase, fragbase):
    for k in range(nblk):
        for u in range(4):
            e(f"v_perm_b32 v{fragbase+8*k+u}, v{ldbase+8*k+4+u}, v{ldbase+8*k+u}, s60")
            e(f"v_perm_b32 v{fragbase+8*k+4+u}, v{ldbase+8*k+4+u}, v{ldbase+8*k+u}, s61")
def gemv_mfma(nt, fragbase, afbase, accbase, guards={}):
    for t in range(nt):
        skip=None
        if t in guards: skip=g.newlab("Lskm"); guards[t](skip)
        for hb in range(2):
            for j in range(2):
                a=accbase+(hb*2+j)*4
                cc = "0" if t==0 else vr(a)
                e(f"v_mfma_f32_16x16x32_bf16 {vr(a)}, {vr(afbase+4*t)}, {vr(fragbase+8*(2*t+hb)+4*j)}, {cc}")
        if skip: g.lab(skip)
def gemv_combine_to_lds(accbase, T=136):
    e("s_nop 7"); e("s_nop 3")
    e("s_mov_b32 s58, 0"); e("s_mov_b32 s59, -1")
    for j in range(2):
        for c in range(4):
            e(f"v_cndmask_b32 v{accbase+4*j+c}, v{accbase+4*j+c}, v{accbase+8+4*j+c}, s[58:59]")
    e("v_lshrrev_b32 v6, 1, v1"); e("v_lshlrev_b32 v6, 10, v6"); e("v_and_b32 v7, 1, v1"); e("v_lshl_add_u32 v6, v7, 9, v6"); e("v_lshl_add_u32 v6, v2, 3, v6")
    e("s_lshl_b32 s56, s3, 11"); e("v_add_u32 v6, s56, v6")
    for c in range(4):
        e(f"v_mov_b32 v{T+2*c}, v{accbase+c}"); e(f"v_mov_b32 v{T+2*c+1}, v{accbase+4+c}")
    for c in range(4):
        e(f"ds_write_b64 v6, {vr(T+2*c,2)} offset:{LDS_RED+128*c}")
    e("s_waitcnt lgkmcnt(0)")
def gemv_final_sum(dst, T=136):
    e("v_lshlrev_b32 v6, 4, v0")
    for k in range(8): e(f"ds_read_b128 {vr(T+4*k)}, v6 offset:{LDS_RED+1024*k}")
    e("s_waitcnt lgkmcnt(0)")
    for c in range(4):
        e(f"v_add_f32 v{dst+c}, v{T+c}, v{T+4+c}")
        for k in range(2,8): e(f"v_add_f32 v{dst+c}, v{dst+c}, v{T+4*k+c}")
def silu_pair(lo,hi,t0,t1):
    nl=0xbfb8aa3b
    e(f"v_mul_f32 v{t0}, 0x{nl:x}, v{lo}"); e(f"v_mul_f32 v{t1}, 0x{nl:x}, v{hi}")
    e(f"v_exp_f32 v{t0}, v{t0}"); e(f"v_exp_f32 v{t1}, v{t1}")
    e("s_nop 0")
    e(f"v_add_f32 v{t0}, 1.0, v{t0}"); e(f"v_add_f32 v{t1}, 1.0, v{t1}")
    e(f"v_rcp_f32 v{t0}, v{t0}"); e(f"v_rcp_f32 v{t1}, v{t1}")
    e("s_nop 0")
    e(f"v_mul_f32 v{lo}, v{lo}, v{t0}"); e(f"v_mul_f32 v{hi}, v{hi}, v{t1}")
def unpack(src,lo,hi):
    e(f"v_lshlrev_b32 v{lo}, 16, v{src}"); e(f"v_and_b32 v{hi}, 0xffff0000, v{src}")
def round_pair(a,b,t):
    e(f"v_cvt_pk_bf16_f32 v{t}, v{a}, v{b}"); unpack(t,a,b)
def xor_reduce_add_345(v,t):
    e("s_nop 1")
    e(f"v_add_f32_dpp v{v}, v{v}, v{v} row_ror:8 row_mask:0xf bank_mask:0xf")
    e(f"v_mov_b32 v{t}, v{v}"); e("s_nop 1"); e(f"v_permlane16_swap_b32 v{v}, v{t}"); e("s_nop 1"); e(f"v_add_f32 v{v}, v{v}, v{t}")
    e(f"v_mov_b32 v{t}, v{v}"); e("s_nop 1"); e(f"v_permlane32_swap_b32 v{v}, v{t}"); e("s_nop 1"); e(f"v_add_f32 v{v}, v{v}, v{t}")
def stats_finish(vs, vq, vmean, vrs, t):
    inv=f2u(1.0/640)
    e(f"v_mul_f32 v{vs}, 0x{inv:x}, v{vs}"); e(f"v_mul_f32 v{vq}, 0x{inv:x}, v{vq}")
    e(f"v_fma_f32 v{vq}, -v{vs}, v{vs}, v{vq}")
    e(f"v_max_f32 v{vq}, 0, v{vq}")
    e(f"v_cvt_pk_bf16_f32 v{t}, v{vs}, v{vq}")
    unpack(t, vmean, vq)
    e(f"v_add_f32 v{vq}, 0x{f2u(1e-5):x}, v{vq}")
    e(f"v_cvt_pk_bf16_f32 v{t}, v{vq}, v{vq}"); e(f"v_lshlrev_b32 v{vq}, 16, v{t}")
    e(f"v_sqrt_f32 v{vq}, v{vq}"); e("s_nop 0")
    e(f"v_cvt_pk_bf16_f32 v{t}, v{vq}, v{vq}"); e(f"v_lshlrev_b32 v{vq}, 16, v{t}")
    e(f"v_rcp_f32 v{vrs}, v{vq}"); e("s_nop 0")
def ln_mod_pair(a,b,ca_src,sa_src,vmean,vrs,t0,t1,t2):
    e(f"v_sub_f32 v{a}, v{a}, v{vmean}"); e(f"v_sub_f32 v{b}, v{b}, v{vmean}")
    round_pair(a,b,t0)
    e(f"v_mul_f32 v{a}, v{a}, v{vrs}"); e(f"v_mul_f32 v{b}, v{b}, v{vrs}")
    round_pair(a,b,t0)
    unpack(ca_src,t1,t2)
    e(f"v_add_f32 v{t1}, 1.0, v{t1}"); e(f"v_add_f32 v{t2}, 1.0, v{t2}")
    round_pair(t1,t2,t0)
    e(f"v_mul_f32 v{a}, v{a}, v{t1}"); e(f"v_mul_f32 v{b}, v{b}, v{t2}")
    round_pair(a,b,t0)
    unpack(sa_src,t1,t2)
    e(f"v_add_f32 v{a}, v{a}, v{t1}"); e(f"v_add_f32 v{b}, v{b}, v{t2}")
    e(f"v_cvt_pk_bf16_f32 v{a}, v{a}, v{b}")
def guard3(fn):
    skip=g.newlab("Lsk3"); g_w2(skip); fn(); g.lab(skip)
def sentinel_check(regs):
    e(f"v_cmp_eq_u32 vcc, -1, v{regs[0]}")
    for k in regs[1:]: e(f"v_cmp_eq_u32 s[58:59], -1, v{k}"); e("s_or_b64 vcc, vcc, s[58:59]")
def get_nonce(tv):
    e(f"v_mov_b32 v{tv+1}, 0")
    lp=g.newlab("Lpoll"); g.lab(lp)
    e(f"buffer_load_dword v{tv}, v{tv+1}, s[40:43], 0 offen sc1")
    e("s_waitcnt vmcnt(0)")
    e(f"v_cmp_eq_u32 vcc, 0, v{tv}")
    poll_tail(lp,1)
    e(f"v_readfirstlane_b32 s31, v{tv}")
def check_rdy(tv, idx_code, n=1):
    pass
def poll_rdy_all(tv):
    e(f"v_lshlrev_b32 v{tv+4}, 7, v0"); e(f"s_mov_b32 s56, {WS_RDY}"); e(f"s_mov_b32 s57, {WS_RDY+64*128}"); e(f"s_mov_b32 s62, {WS_RDY+128*128}"); e(f"s_mov_b32 s63, {WS_RDY+192*128}")
    lp=g.newlab("Lpoll"); g.lab(lp)
    for k,sg in enumerate(["s56","s57","s62","s63"]): e(f"buffer_load_dword v{tv+k}, v{tv+4}, s[36:39], {sg} offen sc1")
    e("s_waitcnt vmcnt(0)")
    e(f"v_cmp_ne_u32 vcc, s31, v{tv}")
    for k in range(1,4): e(f"v_cmp_ne_u32 s[58:59], s31, v{tv+k}"); e("s_or_b64 vcc, vcc, s[58:59]")
    poll_tail(lp,4)
def poll_rdy_range(tv, base_sreg_code, cnt):
    e(f"v_min_u32 v{tv+1}, {cnt-1}, v0"); e(f"v_lshlrev_b32 v{tv+1}, 7, v{tv+1}"); base_sreg_code()
    lp=g.newlab("Lpoll"); g.lab(lp)
    e(f"buffer_load_dword v{tv}, v{tv+1}, s[36:39], s56 offen sc1")
    e("s_waitcnt vmcnt(0)")
    e(f"v_cmp_ne_u32 vcc, s31, v{tv}")
    poll_tail(lp,2)

def do_reset():
    g.c("reset of own ws slots (wave 3) + rdy")
    sk=g.newlab("Lnoreset"); e("s_cmp_lg_u32 s3, 3"); e(f"s_cbranch_scc1 {sk}")
    l0=g.newlab("Lr"); e("s_cmp_lg_u32 s2, 0"); e(f"s_cbranch_scc1 {l0}")
    e("s_memrealtime s[58:59]"); e("s_waitcnt lgkmcnt(0)"); e("s_or_b32 s58, s58, 1"); e(f"v_mov_b32 v{T}, s58"); e(f"v_mov_b32 v{T+1}, 0")
    e(f"buffer_store_dword v{T}, v{T+1}, s[40:43], 0 offen sc1")
    g.lab(l0)
    for k in range(4): e(f"v_mov_b32 v{T+k}, -1")
    e(f"v_lshlrev_b32 v{T+4}, 2, v0"); e(f"v_lshlrev_b32 v{T+5}, 3, v0"); e(f"v_lshlrev_b32 v{T+6}, 4, v0")
    e("s_lshl_b32 s56, s35, 3"); e("s_add_u32 s56, s56, s34"); e("s_lshl_b32 s56, s56, 8"); e(f"s_add_u32 s56, s56, {WS_O}")
    e(f"buffer_store_dword v{T}, v{T+4}, s[36:39], s56 offen sc1")
    l1=g.newlab("Lr"); e("s_cmp_ge_u32 s2, 120"); e(f"s_cbranch_scc1 {l1}")
    e("s_lshl_b32 s56, s2, 9"); e(f"buffer_store_dwordx2 {vr(T,2)}, v{T+5}, s[36:39], s56 offen sc1")
    g.lab(l1)
    l1=g.newlab("Lr"); e("s_cmp_lt_u32 s2, 128"); e(f"s_cbranch_scc1 {l1}")
    e("s_sub_u32 s56, s2, 128"); e("s_lshl_b32 s56, s56, 9"); e(f"s_add_u32 s56, s56, {WS_Q}")
    e(f"buffer_store_dwordx2 {vr(T,2)}, v{T+5}, s[36:39], s56 offen sc1")
    g.lab(l1)
    l2=g.newlab("Lr"); e("s_sub_u32 s56, s2, 160"); e("s_cmp_ge_u32 s56, 54"); e(f"s_cbranch_scc1 {l2}")
    e("s_lshl_b32 s56, s56, 9"); e(f"s_add_u32 s56, s56, {WS_H1}")
    e(f"buffer_store_dwordx2 {vr(T,2)}, v{T+5}, s[36:39], s56 offen sc1")
    g.lab(l2)
    l3=g.newlab("Lr"); e("s_cmp_ge_u32 s2, 80"); e(f"s_cbranch_scc1 {l3}")
    e("s_lshl_b32 s56, s2, 10"); e(f"s_add_u32 s56, s56, {WS_X1P}")
    e(f"buffer_store_dwordx4 {vr(T)}, v{T+6}, s[36:39], s56 offen sc1")
    g.lab(l3)
    get_nonce(T+8)
    e(f"v_mov_b32 v{T+1}, 0"); e("s_lshl_b32 s56, s2, 7"); e(f"s_add_u32 s56, s56, {WS_RDY}")
    e("s_mov_b64 s[58:59], exec"); e("s_mov_b64 exec, 1")
    e(f"buffer_store_dword v{T+8}, v{T+1}, s[36:39], s56 offen sc1")
    e("s_mov_b64 exec, s[58:59]")
    g.lab(sk)
def bar0():
    if "bar0" in OPT: e("s_barrier")

e("s_cmp_ge_u32 s2, 128"); e("s_cbranch_scc1 L_P2")
e("s_cmp_ge_u32 s2, 120"); e("s_cbranch_scc1 L_PNONE")
g.c("---- P1: mod piece = wg")
srd(48,24,8*640*2)
e("s_lshl_b32 s56, s2, 6"); e("s_add_u32 s44, s26, s56"); e("s_addc_u32 s45, s27, 0"); e("s_sub_u32 s46, %d, s56"%(640*7680)); e("s_mov_b32 s47, 0x20000")
e("s_movk_i32 s57, 1280"); e("v_mul_lo_u32 v6, v3, s57"); e(f"v_add_u32 v6, v6, v{VAK}")
e("s_lshl_b32 s56, s3, 7")
for t in range(3): e(f"buffer_load_dwordx4 {vr(AF+4*t)}, v6, s[48:51], s56 offen offset:{512*t}")
e("s_mov_b32 s57, %d"%(8*7680)); e("v_mul_lo_u32 v5, v1, s57"); e("v_lshl_add_u32 v5, v2, 2, v5")
wload(3,7680,WL,pair_w4t(7680),{2:g_w2})
bar0()
do_reset()
e("s_waitcnt vmcnt(0)")
def p1_silu(t):
    for d in range(4):
        r_=AF+4*t+d
        unpack(r_,T,T+1); silu_pair(T,T+1,T+2,T+3); e(f"v_cvt_pk_bf16_f32 v{r_}, v{T}, v{T+1}")
p1_silu(0); p1_silu(1); guard3(lambda: p1_silu(2))
wperm(4,WL,WA); guard3(lambda: wperm(2,WL+32,WA+32))
e("s_nop 1")
gemv_mfma(3,WA,AF,ACC,{2:g_w2})
gemv_combine_to_lds(ACC)
stamp(1)
e("s_barrier")
l=g.newlab("Lp1d"); e("s_cmp_lg_u32 s3, 0"); e(f"s_cbranch_scc1 {l}")
gemv_final_sum(8)
e("v_cvt_pk_bf16_f32 v8, v8, v9"); e("v_cvt_pk_bf16_f32 v9, v10, v11")
e("v_min_u32 v8, 0xfffeffff, v8"); e("v_min_u32 v9, 0xfffeffff, v9")
e("v_lshlrev_b32 v6, 3, v0"); e("s_lshl_b32 s56, s2, 9")
e("buffer_store_dwordx2 v[8:9], v6, s[36:39], s56 offen sc1")
g.lab(l)
e("s_branch L_QWAIT")
g.lab("L_PNONE")
bar0()
do_reset()
e("s_barrier")
e("s_branch L_QWAIT")
g.lab("L_P2")
g.c("---- P2: q piece = wg-128")
srd(48,8,8*640*2)
e("s_sub_u32 s57, s2, 128"); e("s_lshl_b32 s56, s57, 6"); e("s_add_u32 s44, s14, s56"); e("s_addc_u32 s45, s15, 0"); e("s_sub_u32 s46, %d, s56"%(640*8192)); e("s_mov_b32 s47, 0x20000")
e("s_movk_i32 s57, 1280"); e("v_mul_lo_u32 v6, v3, s57")
e("v_lshrrev_b32 v7, 3, v2"); e("v_lshl_add_u32 v7, v1, 1, v7"); e("s_movk_i32 s57, 160"); e("v_mul_lo_u32 v7, v7, s57"); e("v_add_u32 v7, v7, v6")
XS=WA
for k in range(10): e(f"buffer_load_dwordx4 {vr(XS+4*k)}, v7, s[48:51], 0 offen offset:{16*k}")
e(f"v_add_u32 v6, v6, v{VAK}")
e("s_lshl_b32 s56, s3, 7")
for t in range(3): e(f"buffer_load_dwordx4 {vr(AF+4*t)}, v6, s[48:51], s56 offen offset:{512*t}")
e("v_lshlrev_b32 v5, 16, v1"); e("v_lshl_add_u32 v5, v2, 2, v5")
wload(3,8192,WL,pair_w4t(8192),{2:g_w2})
bar0()
do_reset()
e("s_waitcnt vmcnt(0)")
e(f"v_mov_b32 v{T+8}, 0"); e(f"v_mov_b32 v{T+9}, 0")
for k in range(40):
    unpack(XS+k,T,T+1)
    e(f"v_add_f32 v{T+8}, v{T+8}, v{T}"); e(f"v_fmac_f32 v{T+9}, v{T}, v{T}")
    e(f"v_add_f32 v{T+8}, v{T+8}, v{T+1}"); e(f"v_fmac_f32 v{T+9}, v{T+1}, v{T+1}")
xor_reduce_add_345(T+8,T); xor_reduce_add_345(T+9,T)
VMEAN=36; VRS=37
stats_finish(T+8,T+9,VMEAN,VRS,T)
wperm(4,WL,WA); guard3(lambda: wperm(2,WL+32,WA+32))
get_nonce(T)
poll_rdy_range(T, lambda: e(f"s_mov_b32 s56, {WS_RDY}"), 40)
stamp(2)
SA=WL; CA=WL+12
e("s_lshl_b32 s56, s3, 10")
e("s_add_u32 s57, s56, 4096"); e("s_add_u32 s62, s56, 8192")
e("s_min_u32 s62, s62, %d"%(9*1024))
e("s_add_u32 s63, s56, %d"%(20*512)); e("s_add_u32 s64, s57, %d"%(20*512)); e("s_add_u32 s65, s62, %d"%(20*512))
lp=g.newlab("Lpoll"); g.lab(lp)
for t,sg in enumerate(["s56","s57","s62"]): e(f"buffer_load_dwordx4 {vr(SA+4*t)}, v4, s[36:39], {sg} offen sc1")
for t,sg in enumerate(["s63","s64","s65"]): e(f"buffer_load_dwordx4 {vr(CA+4*t)}, v4, s[36:39], {sg} offen sc1")
e("s_waitcnt vmcnt(0)")
sentinel_check(list(range(SA,SA+24)))
poll_tail(lp,1)
def p2_h(t):
    for d in range(4):
        r_=AF+4*t+d
        unpack(r_,T,T+1)
        ln_mod_pair(T,T+1,CA+4*t+d,SA+4*t+d,VMEAN,VRS,T+2,T+3,T+4)
        e(f"v_mov_b32 v{r_}, v{T}")
p2_h(0); p2_h(1); guard3(lambda: p2_h(2))
e("s_nop 1")
gemv_mfma(3,WA,AF,ACC,{2:g_w2})
gemv_combine_to_lds(ACC)
stamp(1)
e("s_barrier")
l=g.newlab("Lp2d"); e("s_cmp_lg_u32 s3, 0"); e(f"s_cbranch_scc1 {l}")
gemv_final_sum(8)
e("v_cvt_pk_bf16_f32 v8, v8, v9"); e("v_cvt_pk_bf16_f32 v9, v10, v11")
e("v_min_u32 v8, 0xfffeffff, v8"); e("v_min_u32 v9, 0xfffeffff, v9")
e("v_lshlrev_b32 v6, 3, v0"); e("s_sub_u32 s56, s2, 128"); e("s_lshl_b32 s56, s56, 9"); e(f"s_add_u32 s56, s56, {WS_Q}")
e("buffer_store_dwordx2 v[8:9], v6, s[36:39], s56 offen sc1")
g.lab(l)
g.lab("L_QWAIT")
l=g.newlab("Lqd"); e("s_cmp_lg_u32 s3, 1"); e(f"s_cbranch_scc1 {l}")
get_nonce(T)
def _b(): e("s_lshl_b32 s56, s35, 2"); e("s_add_u32 s56, s56, 128"); e("s_lshl_b32 s56, s56, 7"); e(f"s_add_u32 s56, s56, {WS_RDY}")
poll_rdy_range(T,_b,4)
e("v_lshlrev_b32 v7, 9, v1"); e("v_lshl_add_u32 v7, v2, 2, v7")
e("s_lshl_b32 s56, s35, 11"); e("s_lshl_b32 s57, s34, 6"); e("s_add_u32 s56, s56, s57"); e(f"s_add_u32 s56, s56, {WS_Q}")
lp=g.newlab("Lpoll"); g.lab(lp)
e(f"buffer_load_dword v{T}, v7, s[36:39], s56 offen sc1")
e("s_waitcnt vmcnt(0)")
e(f"v_cmp_eq_u32 vcc, -1, v{T}")
poll_tail(lp,1)
e("v_lshlrev_b32 v7, 2, v0")
e(f"ds_write_b32 v7, v{T} offset:{LDS_Q}")
e("s_waitcnt lgkmcnt(0)")
g.lab(l)
stamp(3)
e("s_barrier")
g.c("---- epilogue weight preload")
get_nonce(T)
e("s_cmp_ge_u32 s2, 214"); e("s_cbranch_scc1 L_W3")
e("s_cmp_ge_u32 s2, 160"); e("s_cbranch_scc1 L_W2")
e("s_cmp_ge_u32 s2, 80"); e("s_cbranch_scc1 L_WDONE")
e("s_mul_hi_u32 s66, s2, %d"%((1<<32)//20+1)); e("s_mul_i32 s67, s66, 20"); e("s_sub_u32 s67, s2, s67")
e("s_lshl_b32 s56, s67, 6"); e("s_add_u32 s44, s16, s56"); e("s_addc_u32 s45, s17, 0"); e("s_sub_u32 s46, %d, s56"%(4096*1280)); e("s_mov_b32 s47, 0x20000")
e("s_movk_i32 s57, %d"%(8*1280)); e("v_mul_lo_u32 v5, v1, s57"); e("v_lshl_add_u32 v5, v2, 2, v5")
def own_pair(t): e("s_lshl_b32 s56, s66, 4"); e("s_lshl_b32 s57, s3, 2"); e("s_add_u32 s56, s56, s57"); e(f"s_add_u32 s56, s56, {t}"); e(f"s_mul_i32 s56, s56, {64*1280}")
wload(4,1280,72+32+0 if False else 104,own_pair)
e("s_waitcnt vmcnt(0)")
wperm(8,104,40)
poll_rdy_all(T)
e("s_branch L_WDONE")
g.lab("L_W2")
e("s_sub_u32 s57, s2, 160"); e("s_lshl_b32 s56, s57, 6"); e("s_add_u32 s44, s20, s56"); e("s_addc_u32 s45, s21, 0"); e("s_sub_u32 s46, %d, s56"%(640*3456)); e("s_mov_b32 s47, 0x20000")
e("s_movk_i32 s57, %d"%(8*3456)); e("v_mul_lo_u32 v5, v1, s57"); e("v_lshl_add_u32 v5, v2, 2, v5")
WA2=104
wload(3,3456,40,pair_w4t(3456),{2:g_w2})
e("s_waitcnt vmcnt(0)")
wperm(4,40,WA2); guard3(lambda: wperm(2,40+32,WA2+32))
poll_rdy_all(152)
srd(48,8,8*640*2)
e("s_movk_i32 s57, 1280"); e("v_mul_lo_u32 v6, v3, s57"); e(f"v_add_u32 v6, v6, v{VAK}")
e("s_lshl_b32 s56, s3, 7")
for t in range(3): e(f"buffer_load_dwordx4 {vr(40+4*t)}, v6, s[48:51], s56 offen offset:{512*t}")
e("s_lshl_b32 s56, s3, 10"); e("s_add_u32 s57, s56, 4096"); e("s_add_u32 s62, s56, 8192"); e("s_min_u32 s62, s62, %d"%(9*1024))
lp=g.newlab("Lpoll"); g.lab(lp)
for q_,pb in enumerate([40,60,80]):
    for t,sg in enumerate(["s56","s57","s62"]):
        e(f"s_add_u32 s63, {sg}, {pb*512}"); e(f"buffer_load_dwordx4 {vr(52+12*q_+4*t)}, v4, s[36:39], s63 offen sc1")
e("s_waitcnt vmcnt(0)")
sentinel_check(list(range(52,88)))
poll_tail(lp,4)
e("v_lshlrev_b32 v6, 4, v0"); e("s_mul_i32 s56, s3, %d"%(48*256)); e("v_add_u32 v6, s56, v6")
for k in range(12): e(f"ds_write_b128 v6, {vr(40+4*k)} offset:{LDS_PRE+1024*k}")
e("s_waitcnt lgkmcnt(0)")
e("s_branch L_WDONE")
g.lab("L_W3")
e("s_cmp_ge_u32 s2, 234"); e("s_cbranch_scc1 L_WDONE")
e("s_sub_u32 s57, s2, 214"); e("s_lshl_b32 s56, s57, 6"); e("s_add_u32 s44, s22, s56"); e("s_addc_u32 s45, s23, 0"); e("s_sub_u32 s46, %d, s56"%(1728*1280)); e("s_mov_b32 s47, 0x20000")
e("s_movk_i32 s57, %d"%(8*1280)); e("v_mul_lo_u32 v5, v1, s57"); e("v_lshl_add_u32 v5, v2, 2, v5")
poll_rdy_all(8)
W3=40
for t in range(7):
    sk=None
    if t==6: sk=g.newlab("Lsk7"); g_w3(sk)
    e(f"s_add_u32 s56, s3, {4*t}"); e(f"s_mul_i32 s56, s56, {64*1280}")
    for hb in range(2):
        for i in range(8):
            e(f"buffer_load_dword v{8+hb*8+(i>>1)+4*(i&1)}, v5, s[44:47], s56 offen")
            e(f"s_add_u32 s56, s56, {1280 if i<7 else 1280*25}")
    e("s_waitcnt vmcnt(0)")
    wperm(2,8,W3+16*t)
    if sk: g.lab(sk)
e("s_cmp_lg_u32 s3, 3"); e("s_cbranch_scc1 L_WDONE")
srd(48,8,8*640*2)
e("v_lshrrev_b32 v6, 3, v0"); e("v_and_b32 v7, 7, v0"); e("v_lshlrev_b32 v7, 3, v7")
e("s_movk_i32 s57, 1280"); e("v_mul_lo_u32 v8, v6, s57"); e("v_add_u32 v8, v8, v7")
e("s_sub_u32 s57, s2, 214"); e("s_lshl_b32 s56, s57, 6")
e("buffer_load_dwordx2 v[144:145], v8, s[48:51], s56 offen")
e("v_lshlrev_b32 v9, 3, v0"); e("s_lshl_b32 s56, s57, 9"); e(f"s_add_u32 s57, s56, {40*512}"); e(f"s_add_u32 s56, s56, {100*512}")
lp=g.newlab("Lpoll"); g.lab(lp)
e("buffer_load_dwordx2 v[146:147], v9, s[36:39], s57 offen sc1"); e("buffer_load_dwordx2 v[148:149], v9, s[36:39], s56 offen sc1")
e("s_waitcnt vmcnt(0)")
sentinel_check([146,147,148,149])
poll_tail(lp,4)
g.lab("L_WDONE")
stamp(4)
e("s_barrier")
stamp(5)
g.c("---- merge partials (wave 0)")
l=g.newlab("Lmd"); e("s_cmp_lg_u32 s3, 0"); e(f"s_cbranch_scc1 {l}")
M=8
e("v_lshlrev_b32 v6, 3, v0"); e("v_mov_b32 v7, 0")
for w in range(8): e(f"ds_read_b64 {vr(M+2*w,2)}, v6 offset:{LDS_PART+512*w}")
for k in range(3): e(f"ds_read_b128 {vr(24+4*k)}, v7 offset:{LDS_ML+16*k}")
e(f"ds_read_b128 v[152:155], v7 offset:{LDS_ML+48}")
e("s_waitcnt lgkmcnt(0)")
mreg=[24,26,28,30,32,34,152,154]
e("v_max3_f32 v6, v24, v26, v28"); e("v_max3_f32 v6, v6, v30, v32"); e("v_max3_f32 v6, v6, v34, v152"); e("v_max_f32 v6, v6, v154")
e(f"s_mov_b32 s57, 0x{f2u(C1):x}")
for w in range(8):
    m=mreg[w]; e(f"v_sub_f32 v{m}, v{m}, v6"); e(f"v_mul_f32 v{m}, s57, v{m}"); e(f"v_exp_f32 v{m}, v{m}")
e("s_nop 0")
e("v_mul_f32 v7, v24, v25"); e("v_mul_f32 v156, v8, v24"); e("v_mul_f32 v157, v9, v24")
for w in range(1,8):
    m=mreg[w]; e(f"v_fmac_f32 v7, v{m}, v{m+1}"); e(f"v_fmac_f32 v156, v{M+2*w}, v{m}"); e(f"v_fmac_f32 v157, v{M+2*w+1}, v{m}")
e("v_rcp_f32 v7, v7"); e("s_nop 0"); e("v_mul_f32 v156, v156, v7"); e("v_mul_f32 v157, v157, v7")
e("v_cvt_pk_bf16_f32 v156, v156, v157"); e("v_min_u32 v156, 0xfffeffff, v156")
e("s_lshl_b32 s56, s35, 3"); e("s_add_u32 s56, s56, s34"); e("s_lshl_b32 s56, s56, 8"); e(f"s_add_u32 s56, s56, {WS_O}")
e("v_lshlrev_b32 v6, 2, v0")
e("buffer_store_dword v156, v6, s[36:39], s56 offen sc1")
g.lab(l)
e("s_cmp_ge_u32 s2, 214"); e("s_cbranch_scc1 L_E3")
e("s_cmp_ge_u32 s2, 160"); e("s_cbranch_scc1 L_E2")
e("s_cmp_ge_u32 s2, 80"); e("s_cbranch_scc1 L_END")
g.c("---- owner: gather o heads 8kq+2w, +1 ; pairs t=0..3: head=8kq+2w+(t>>1), half=t&1")
e(f"v_lshl_add_u32 v6, v3, 8, v{VAK}")
e("s_lshl_b32 s56, s66, 3"); e("s_lshl_b32 s57, s3, 1"); e("s_add_u32 s56, s56, s57"); e("s_lshl_b32 s56, s56, 11"); e(f"s_add_u32 s56, s56, {WS_O}")
lp=g.newlab("Lpoll"); g.lab(lp)
for t in range(4): e(f"buffer_load_dwordx4 {vr(8+4*t)}, v6, s[36:39], s56 offen offset:{2048*(t>>1)+128*(t&1)} sc1")
e("s_waitcnt vmcnt(0)")
sentinel_check(list(range(8,24)))
poll_tail(lp,1)
stamp(6)
gemv_mfma(4,40,8,104)
gemv_combine_to_lds(104)
e("s_barrier")
e("s_cmp_lg_u32 s3, 0"); e("s_cbranch_scc1 L_END")
gemv_final_sum(8)
for k in range(4): e(f"v_min_u32 v{8+k}, 0xfffeffff, v{8+k}")
e("v_lshlrev_b32 v6, 4, v0"); e("s_lshl_b32 s56, s2, 10"); e(f"s_add_u32 s56, s56, {WS_X1P}")
e("buffer_store_dwordx4 v[8:11], v6, s[36:39], s56 offen sc1")
e("s_branch L_END")
g.lab("L_E2")
g.c("---- E2")
e("v_lshrrev_b32 v6, 3, v2"); e("v_lshlrev_b32 v6, 10, v6"); e("v_lshl_add_u32 v6, v3, 7, v6"); e("v_lshl_add_u32 v6, v1, 5, v6")
e("s_lshl_b32 s56, s3, 11"); e(f"s_add_u32 s56, s56, {WS_X1P}")
e("s_add_u32 s57, s56, 8192"); e("s_add_u32 s62, s56, 16384"); e(f"s_min_u32 s62, s62, {WS_X1P+9*2048}")
GX=8
lp=g.newlab("Lpoll"); g.lab(lp)
for t,sg in enumerate(["s56","s57","s62"]):
    for kq in range(4):
        e(f"s_add_u32 s63, {sg}, {kq*20*1024}")
        e(f"buffer_load_dwordx4 {vr(GX+32*t+8*kq)}, v6, s[36:39], s63 offen sc1"); e(f"buffer_load_dwordx4 {vr(GX+32*t+8*kq+4)}, v6, s[36:39], s63 offen offset:16 sc1")
e("s_waitcnt vmcnt(0)")
sentinel_check(list(range(GX,GX+96)))
poll_tail(lp,1)
stamp(6)
for t in range(3):
    for k in range(8):
        b0=GX+32*t+k
        e(f"v_add_f32 v{b0}, v{b0}, v{b0+8}"); e(f"v_add_f32 v{b0+16}, v{b0+16}, v{b0+24}")
    for k in range(8):
        b0=GX+32*t+k
        e(f"v_add_f32 v{8+8*t+k}, v{b0}, v{b0+16}")
e("v_lshlrev_b32 v6, 4, v0"); e("s_mul_i32 s56, s3, %d"%(48*256)); e("v_add_u32 v6, s56, v6")
for k in range(12): e(f"ds_read_b128 {vr(40+4*k)}, v6 offset:{LDS_PRE+1024*k}")
XF=40; GAF=52; SBF=64; CBF=76
e("v_mov_b32 v32, 0"); e("v_mov_b32 v33, 0")
e("s_waitcnt lgkmcnt(0)")
def e2_x1(t):
    for d in range(4):
        a=8+8*t+2*d; b=a+1
        round_pair(a,b,34)
        unpack(GAF+4*t+d,35,36)
        e(f"v_mul_f32 v{a}, v{a}, v35"); e(f"v_mul_f32 v{b}, v{b}, v36")
        round_pair(a,b,34)
        unpack(XF+4*t+d,35,36)
        e(f"v_add_f32 v{a}, v{a}, v35"); e(f"v_add_f32 v{b}, v{b}, v36")
        round_pair(a,b,34)
        e(f"v_add_f32 v32, v32, v{a}"); e(f"v_fmac_f32 v33, v{a}, v{a}"); e(f"v_add_f32 v32, v32, v{b}"); e(f"v_fmac_f32 v33, v{b}, v{b}")
e2_x1(0); e2_x1(1); guard3(lambda: e2_x1(2))
xor_reduce_add_345(32,34); xor_reduce_add_345(33,34)
e("v_lshlrev_b32 v7, 3, v3"); e("s_lshl_b32 s56, s3, 6"); e("v_add_u32 v7, s56, v7")
e(f"ds_write_b64 v7, v[32:33] offset:{LDS_ST}")
e("s_waitcnt lgkmcnt(0)"); e("s_barrier")
e("v_lshlrev_b32 v7, 3, v3")
for w in range(4): e(f"ds_read_b64 {vr(88+2*w,2)}, v7 offset:{LDS_ST+64*w}")
e("s_waitcnt lgkmcnt(0)")
e("v_add_f32 v32, v88, v90"); e("v_add_f32 v32, v32, v92"); e("v_add_f32 v32, v32, v94")
e("v_add_f32 v33, v89, v91"); e("v_add_f32 v33, v33, v93"); e("v_add_f32 v33, v33, v95")
stats_finish(32,33,96,97,34)
H2=88
def e2_h(t):
    for d in range(4):
        a=8+8*t+2*d; b=a+1
        ln_mod_pair(a,b,CBF+4*t+d,SBF+4*t+d,96,97,34,35,36)
        e(f"v_mov_b32 v{100+4*t+d-12 if False else H2+4*t+d}, v{a}")
H2=152
e2_h(0); e2_h(1); guard3(lambda: e2_h(2))
e("s_nop 1")
gemv_mfma(3,WA2,H2,8,{2:g_w2})
gemv_combine_to_lds(8,T=40)
e("s_barrier")
e("s_cmp_lg_u32 s3, 0"); e("s_cbranch_scc1 L_END")
gemv_final_sum(8,T=40)
round_pair(8,9,12); round_pair(10,11,12)
silu_pair(8,9,12,13); silu_pair(10,11,12,13)
e("v_cvt_pk_bf16_f32 v8, v8, v9"); e("v_cvt_pk_bf16_f32 v9, v10, v11")
e("v_min_u32 v8, 0xfffeffff, v8"); e("v_min_u32 v9, 0xfffeffff, v9")
e("v_lshlrev_b32 v6, 3, v0"); e("s_sub_u32 s56, s2, 160"); e("s_lshl_b32 s56, s56, 9"); e(f"s_add_u32 s56, s56, {WS_H1}")
e("buffer_store_dwordx2 v[8:9], v6, s[36:39], s56 offen sc1")
e("s_branch L_END")
g.lab("L_E3")
g.c("---- E3")
e("s_cmp_ge_u32 s2, 234"); e("s_cbranch_scc1 L_END")
e("s_lshl_b32 s56, s3, 10"); e(f"s_add_u32 s56, s56, {WS_H1}")
e(f"s_add_u32 s57, s3, 24"); e("s_min_u32 s57, s57, 26"); e("s_lshl_b32 s57, s57, 10"); e(f"s_add_u32 s57, s57, {WS_H1}")
e("s_add_u32 s62, s56, 4096"); e("s_add_u32 s63, s56, 8192"); e("s_add_u32 s64, s56, 12288"); e("s_add_u32 s65, s56, 16384"); e("s_add_u32 s66, s56, 20480")
lp=g.newlab("Lpoll"); g.lab(lp)
for t,sg in enumerate(["s56","s62","s63","s64","s65","s66","s57"]): e(f"buffer_load_dwordx4 {vr(8+4*t)}, v4, s[36:39], {sg} offen sc1")
e("s_waitcnt vmcnt(0)")
sentinel_check(list(range(8,36)))
poll_tail(lp,1)
stamp(6)
A3=152
for t in range(7):
    sk=None
    if t==6: sk=g.newlab("Lsk7"); g_w3(sk)
    for hb in range(2):
        for j in range(2):
            a=A3+(hb*2+j)*4
            cc="0" if t==0 else vr(a)
            e(f"v_mfma_f32_16x16x32_bf16 {vr(a)}, {vr(8+4*t)}, {vr(W3+16*t+8*hb+4*j)}, {cc}")
    if sk: g.lab(sk)
l=g.newlab("Le3a"); e("s_cmp_lg_u32 s3, 3"); e(f"s_cbranch_scc1 {l}")
e("v_lshlrev_b32 v6, 4, v0"); e("s_sub_u32 s56, s2, 214"); e("s_lshl_b32 s56, s56, 10"); e(f"s_add_u32 s56, s56, {WS_X1P}")
for kq in range(4):
    e(f"buffer_load_dwordx4 {vr(40+4*kq)}, v6, s[36:39], s56 offen sc1"); e(f"s_add_u32 s56, s56, {20*1024}")
g.lab(l)
gemv_combine_to_lds(A3, T=56)
e("s_barrier")
e("s_cmp_lg_u32 s3, 3"); e("s_cbranch_scc1 L_END")
gemv_final_sum(64, T=8)
e("s_waitcnt vmcnt(0)")
for c in range(4):
    e(f"v_add_f32 v{40+c}, v{40+c}, v{44+c}"); e(f"v_add_f32 v{48+c}, v{48+c}, v{52+c}"); e(f"v_add_f32 v{40+c}, v{40+c}, v{48+c}")
for d in range(2):
    a=40+2*d; b=41+2*d
    round_pair(a,b,70)
    unpack(146+d,71,72); e(f"v_mul_f32 v{a}, v{a}, v71"); e(f"v_mul_f32 v{b}, v{b}, v72"); round_pair(a,b,70)
    unpack(144+d,71,72); e(f"v_add_f32 v{a}, v{a}, v71"); e(f"v_add_f32 v{b}, v{b}, v72"); round_pair(a,b,70)
    r0=64+2*d; r1=65+2*d
    round_pair(r0,r1,70)
    unpack(148+d,71,72); e(f"v_mul_f32 v{r0}, v{r0}, v71"); e(f"v_mul_f32 v{r1}, v{r1}, v72"); round_pair(r0,r1,70)
    e(f"v_add_f32 v{a}, v{a}, v{r0}"); e(f"v_add_f32 v{b}, v{b}, v{r1}")
    e(f"v_cvt_pk_bf16_f32 v{74+d}, v{a}, v{b}")
srd(48,28,8*640*2)
e("v_lshrrev_b32 v6, 3, v0"); e("s_movk_i32 s57, 1280"); e("v_mul_lo_u32 v6, v6, s57"); e("v_and_b32 v7, 7, v0"); e("v_lshl_add_u32 v6, v7, 3, v6")
e("s_sub_u32 s56, s2, 214"); e("s_lshl_b32 s56, s56, 6")
e("buffer_store_dwordx2 v[74:75], v6, s[48:51], s56 offen")
e("s_branch L_END")

g.lab("L_STREAM")
g.c("================ streaming waves")
e("s_sub_u32 s3, s3, 4")
e("v_lshlrev_b32 v4, 8, v2"); e("v_lshl_add_u32 v4, v1, 4, v4")
e("v_lshlrev_b32 v1, 10, v1"); e("v_lshl_add_u32 v1, v2, 4, v1")
e("v_mov_b32 v3, v0")
e("v_mov_b32 v0, v4")
e("s_waitcnt lgkmcnt(0)")
e("s_lshl_b32 s56, s2, 20"); e("s_lshr_b32 s57, s2, 12")
e("s_add_u32 s36, s10, s56"); e("s_addc_u32 s37, s11, s57"); e("s_mov_b32 s38, 0x100000"); e("s_mov_b32 s39, 0x20000")
e("s_add_u32 s40, s12, s56"); e("s_addc_u32 s41, s13, s57"); e("s_mov_b32 s42, 0x100000"); e("s_mov_b32 s43, 0x20000")
U=[40,72,104,136]
NTF="nt"
e("s_lshl_b32 s44, s3, 13"); e("s_mov_b32 s45, s44")
def kload(ub):
    e("s_add_u32 s46, s44, 4096")
    for j in range(8):
        e(f"buffer_load_dwordx4 {vr(ub+4*j)}, v0, s[36:39], {'s44' if j<4 else 's46'} offen offset:{64*(j&3)} {NTF}")
    e("s_add_u32 s44, s44, 65536")
def vload(ub):
    e("s_add_u32 s46, s45, 4096")
    for i in range(8):
        e(f"buffer_load_dwordx4 {vr(ub+4*i)}, v1, s[40:43], {'s45' if i<4 else 's46'} offen offset:{256*(i&3)} {NTF}")
    e("s_add_u32 s45, s45, 65536")
bar0()
kload(U[0]); vload(U[1]); kload(U[2]); vload(U[3])
for j in range(8):
    m=(0x0001000100010001<<j)
    e(f"s_mov_b32 s{62+2*j}, 0x{m&0xffffffff:x}"); e(f"s_mov_b32 s{63+2*j}, 0x{m>>32:x}")
e("s_mov_b32 s60, 0x05040100"); e("s_mov_b32 s61, 0x07060302")
e(f"s_mov_b32 s52, 0x{f2u(C1):x}"); e("s_mov_b32 s53, 0x3f803f80")
e("s_mov_b32 s48, 0xff800000"); e("s_mov_b32 s49, 0")
for k in range(4): e(f"v_mov_b32 v{4+k}, 0")
e("v_mov_b32 v2, 0")
stamp(1)
e("s_barrier")
stamp(2)
e("s_barrier")
stamp(3)
e("v_lshrrev_b32 v16, 4, v3"); e("v_lshlrev_b32 v16, 4, v16")
for j in range(4): e(f"ds_read_b128 {vr(24+4*j)}, v16 offset:{LDS_Q+64*j}")
e("s_waitcnt lgkmcnt(0)")
e("s_mov_b32 s50, 0")
g.lab("L_LOOP")
rare=[]
def tile(KB,VB,idx):
    e("s_waitcnt vmcnt(24)")
    for j in range(4):
        e(f"v_mfma_f32_16x16x32_bf16 v[8:11], {vr(KB+4*j)}, {vr(24+4*j)}, {'0' if j==0 else 'v[8:11]'}")
        e(f"v_mfma_f32_16x16x32_bf16 v[12:15], {vr(KB+16+4*j)}, {vr(24+4*j)}, {'0' if j==0 else 'v[12:15]'}")
    kload(KB)
    e("v_max3_f32 v17, v8, v9, v10"); e("v_max3_f32 v17, v17, v11, v12"); e("v_max3_f32 v17, v17, v13, v14"); e("v_max_f32 v17, v17, v15")
    e("v_cmp_lt_f32 vcc, s48, v17")
    e(f"s_cbranch_vccnz L_RARE{idx}")
    g.lab(f"L_CONT{idx}")
    e("v_mov_b32 v16, s49")
    for k in range(8): e(f"v_fma_f32 v{8+k}, v{8+k}, s52, v16")
    for k in range(8): e(f"v_exp_f32 v{8+k}, v{8+k}")
    for u in range(4): e(f"v_cvt_pk_bf16_f32 v{8+u}, v{8+2*u}, v{9+2*u}")
    e("s_waitcnt vmcnt(24)")
    def T0(c):
        for u in range(4): e(f"v_perm_b32 v{16+u}, v{VB+8*u+4+c}, v{VB+8*u+c}, s60")
    def T1(c):
        for u in range(4): e(f"v_perm_b32 v{20+u}, v{VB+8*u+4+c}, v{VB+8*u+c}, s61")
    def Am(j):
        for u in range(4): e(f"v_cndmask_b32 v{12+u}, 0, v{8+u}, s[{62+2*j}:{63+2*j}]")
    T0(0)
    for u in range(4): e(f"v_dot2_f32_bf16 v2, v{8+u}, s53, v2")
    for c in range(4):
        Am(2*c); T1(c)
        if c==3: vload(VB)
        e("v_mfma_f32_16x16x32_bf16 v[4:7], v[12:15], v[16:19], v[4:7]")
        Am(2*c+1)
        if c<3: T0(c+1)
        else: e("s_nop 1")
        e("v_mfma_f32_16x16x32_bf16 v[4:7], v[12:15], v[20:23], v[4:7]")
    rare.append(idx)
tile(U[0],U[1],0); tile(U[2],U[3],1)
e("s_add_u32 s50, s50, 1"); e("s_cmp_lt_u32 s50, 8"); e("s_cbranch_scc1 L_LOOP")
stamp(4)
e("s_nop 7"); e("s_nop 3")
e("v_mov_b32 v17, v2"); e("s_nop 1"); e("v_permlane16_swap_b32 v2, v17"); e("s_nop 1"); e("v_add_f32 v2, v2, v17")
e("v_mov_b32 v17, v2"); e("s_nop 1"); e("v_permlane32_swap_b32 v2, v17"); e("s_nop 1"); e("v_add_f32 v19, v2, v17")
e("v_mov_b32 v18, s48")
e("v_and_b32 v16, 15, v3"); e("v_lshlrev_b32 v16, 5, v16"); e("v_lshrrev_b32 v17, 4, v3"); e("v_lshl_add_u32 v16, v17, 4, v16")
e("s_lshl_b32 s56, s3, 9"); e("v_add_u32 v16, s56, v16")
e("s_lshl_b32 s56, s3, 3"); e("v_mov_b32 v17, s56")
e("s_mov_b32 exec_hi, 0")
e(f"ds_write_b128 v16, v[4:7] offset:{LDS_PART}")
e(f"ds_write_b64 v17, v[18:19] offset:{LDS_ML}")
e("s_waitcnt vmcnt(0) lgkmcnt(0)")
e("s_barrier")
e("s_branch L_END")
for idx in rare:
    g.lab(f"L_RARE{idx}")
    e("v_mov_b32 v18, v17"); e("s_nop 1"); e("v_permlane16_swap_b32 v17, v18"); e("s_nop 1"); e("v_max_f32 v17, v17, v18")
    e("v_mov_b32 v18, v17"); e("s_nop 1"); e("v_permlane32_swap_b32 v17, v18"); e("s_nop 1"); e("v_max_f32 v17, v17, v18")
    e("v_max_f32 v17, s48, v17")
    e("v_sub_f32 v18, s48, v17"); e("v_mul_f32 v18, s52, v18"); e("v_exp_f32 v18, v18")
    e("v_mul_f32 v19, s52, v17"); e("v_sub_f32 v19, 0, v19")
    e("v_readfirstlane_b32 s48, v17"); e("v_readfirstlane_b32 s49, v19")
    for k in range(4): e(f"v_mul_f32 v{4+k}, v{4+k}, v18")
    e("v_mul_f32 v2, v2, v18")
    e("s_nop 1")
    e(f"s_branch L_CONT{idx}")
g.lab("L_END")
if DEBUG_STAMPS:
    e("s_mov_b64 exec, -1")
    stamp(11)
    srd(36,6,WS_SIZE)
    e("s_lshl_b32 s94, s2, 10"); e("s_lshl_b32 s95, s79, 6"); e("s_add_u32 s94, s94, s95"); e(f"s_add_u32 s94, s94, {WS_STAMP}")
    e("v_mov_b32 v1, 0")
    for k in range(12): e(f"v_mov_b32 v0, s{80+k}"); e(f"buffer_store_dword v0, v1, s[36:39], s94 offen offset:{4*k}")
g.lab("L_EXIT")
e("s_endpgm")
g.L.append('.section .rodata,"a"'); g.L.append(".p2align 6"); g.L.append(f".amdhsa_kernel {KNAME}")
for x in ["  .amdhsa_next_free_vgpr 168","  .amdhsa_next_free_sgpr 96","  .amdhsa_accum_offset 168","  .amdhsa_group_segment_fixed_size 0","  .amdhsa_kernarg_size 104","  .amdhsa_user_sgpr_count 2","  .amdhsa_user_sgpr_kernarg_segment_ptr 1","  .amdhsa_system_sgpr_workgroup_id_x 1",".end_amdhsa_kernel"]: g.L.append(x)
open(sys.argv[1],"w").write("\n".join(g.L)+"\n")
```

```python
import sys, struct
KNAME = "adaLN_cond__mha_block_cached__dense_activation_silu__decode_kernel"
OPT = dict((a.split('=')+['1'])[:2] for a in sys.argv[2:])
DEBUG_STAMPS = "stamp" in OPT
WIN = int(OPT.get("win","5"))
WNT = "nt"
P1B=0; P2B=60; OWB=124; E2B=204; E3B=231; IDB=251
WS_MOD=0x0
WS_Q=0x20000
WS_O=0x40000
WS_X1P=0x50000
WS_H1=0x78000
WS_RDY=0x7F000
WS_X1=0x80000
WS_SIZE=0x100000
WS_STAMP=0x90000
LDS_RED=0
LDS_Q=16384
LDS_FLG=16640
LDS_CNT=16656
LDS_NONCE=16660
LDS_QRDY=16664
LDS_PART=16704
LDS_ML=LDS_PART+4096
LDS_ST2=LDS_ML+64
LDS_PF=24576
LDS_ACC=LDS_PF
LDS_SIZE=LDS_PF+131072
C1 = 0.08838834764831845*1.4426950408889634
def f2u(f): return struct.unpack('<I',struct.pack('<f',f))[0]
class G:
    def __init__(s): s.L=[]; s.n=0
    def e(s,x): s.L.append("  "+x)
    def lab(s,x): s.L.append(x+":")
    def newlab(s,p="L"): s.n+=1; return f"{p}_{s.n}"
    def c(s,x): s.L.append("  ; "+x)
g=G(); e=g.e
def stamp(idx):
    if not DEBUG_STAMPS: return
    e("s_memrealtime s[92:93]"); e("s_waitcnt lgkmcnt(0)"); e(f"s_mov_b32 s{80+idx}, s92")
def poll_tail(lp,sl):
    ld=g.newlab("Lpd"); e(f"s_cbranch_vccz {ld}")
    if sl: e(f"s_sleep {sl}")
    e("s_add_u32 s30, s30, 1"); e("s_cmp_gt_u32 s30, 400000"); e(f"s_cbranch_scc0 {lp}"); g.lab(ld)
def vr(b,n=4): return f"v[{b}:{b+n-1}]"
def srd(base, ptr, size):
    e(f"s_mov_b32 s{base}, s{ptr}"); e(f"s_mov_b32 s{base+1}, s{ptr+1}"); e(f"s_mov_b32 s{base+2}, {size}"); e(f"s_mov_b32 s{base+3}, 0x20000")
hdr = open('adaLN_cond__mha_block_cached__dense_activation_silu__decode.s.ref').read().split('\n')
for ln in hdr:
    if ln.startswith('; @launch'): break
    g.L.append(ln)
g.L.append(f"; @launch grid=(256,1,1) block=(768,1,1) lds={LDS_SIZE}")
g.L.append('.amdgcn_target "amdgcn-amd-amdhsa--gfx950"')
g.L.append(".text"); g.L.append(f".globl {KNAME}"); g.L.append(".p2align 8"); g.L.append(f".type {KNAME},@function"); g.lab(KNAME)
e("s_cmp_ge_u32 s2, 256"); e("s_cbranch_scc1 L_EXIT")
e("s_load_dwordx16 s[8:23], s[0:1], 0")
e("s_load_dwordx4 s[24:27], s[0:1], 64")
e("s_load_dwordx2 s[28:29], s[0:1], 80")
e("s_load_dwordx4 s[4:7], s[0:1], 88")
e("v_lshrrev_b32 v1, 6, v0")
e("v_and_b32 v0, 63, v0")
e("v_readfirstlane_b32 s3, v1")
e("s_lshr_b32 s34, s2, 5")
e("s_and_b32 s35, s2, 31")
e("v_lshrrev_b32 v1, 4, v0")
e("v_and_b32 v2, 15, v0")
e("s_mov_b32 s79, s3")
if DEBUG_STAMPS:
    for k in range(12): e(f"s_mov_b32 s{80+k}, 0")
    e("s_waitcnt lgkmcnt(0)")
    stamp(0)
    e("s_memtime s[92:93]"); e("s_waitcnt lgkmcnt(0)"); e("s_mov_b32 s89, s92")
e("s_cmp_ge_u32 s3, 4")
e("s_cbranch_scc1 L_STREAM")

e("s_setprio 3")
e("v_and_b32 v3, 7, v2"); e("v_mov_b32 v4, 0"); e("v_mov_b32 v5, 0")
e("s_mov_b32 s60, 0x05040100"); e("s_mov_b32 s61, 0x07060302"); e("s_mov_b32 s30, 0"); e("s_mov_b32 s31, 0")
l=g.newlab("Lq0"); e("s_cmp_lg_u32 s3, 1"); e(f"s_cbranch_scc1 {l}")
e("v_mov_b32 v6, 0"); e(f"ds_write_b32 v6, v6 offset:{LDS_QRDY}"); e("s_waitcnt lgkmcnt(0)")
g.lab(l)
e("s_waitcnt lgkmcnt(0)")
e("s_barrier")
srd(36,6,WS_SIZE); srd(40,4,256)

def mk_vak(d):
    e(f"v_lshrrev_b32 v{d}, 3, v2"); e(f"v_lshlrev_b32 v{d}, 6, v{d}"); e(f"v_lshl_add_u32 v{d}, v1, 4, v{d}")
def mk_vt(d):
    e(f"v_lshrrev_b32 v{d}, 3, v2"); e(f"v_lshlrev_b32 v{d}, 7, v{d}"); e(f"v_lshl_add_u32 v{d}, v3, 8, v{d}"); e(f"v_lshl_add_u32 v{d}, v1, 5, v{d}")
def mk_vh(d):
    e(f"v_lshrrev_b32 v{d}, 3, v2"); e(f"v_lshlrev_b32 v{d}, 6, v{d}"); e(f"v_lshl_add_u32 v{d}, v3, 7, v{d}"); e(f"v_lshl_add_u32 v{d}, v1, 4, v{d}")
def mk_vx1(d):
    e(f"v_lshrrev_b32 v{d}, 3, v2"); e(f"v_lshlrev_b32 v{d}, 9, v{d}"); e(f"v_lshl_add_u32 v{d}, v3, 6, v{d}"); e(f"v_lshl_add_u32 v{d}, v1, 4, v{d}")
def g_w2(skip): e("s_cmp_ge_u32 s3, 2"); e(f"s_cbranch_scc1 {skip}")
def g_w3(skip): e("s_cmp_eq_u32 s3, 3"); e(f"s_cbranch_scc1 {skip}")
def guard3(fn):
    skip=g.newlab("Lsk3"); g_w2(skip); fn(); g.lab(skip)
def wlane(rowstride):
    e(f"s_mov_b32 s57, {8*rowstride}"); e("v_mul_lo_u32 v5, v1, s57"); e("v_lshl_add_u32 v5, v2, 3, v5")
def wload64(npairs, rowstride, ldbase, pair_code, guards={}):
    for t in range(npairs):
        skip=None
        if t in guards: skip=g.newlab("Lskw"); guards[t](skip)
        pair_code(t)
        for hb in range(2):
            for i in range(8):
                e(f"buffer_load_dwordx2 {vr(ldbase+(2*t+hb)*16+2*i,2)}, v5, s[44:47], s56 offen {WNT}")
                if not (hb==1 and i==7): e(f"s_add_u32 s56, s56, {rowstride if i<7 else rowstride*25}")
        if skip: g.lab(skip)
def wperm64(ld, fr):
    for u in range(4):
        e(f"v_perm_b32 v{fr+u}, v{ld+4*u+2}, v{ld+4*u}, s60")
        e(f"v_perm_b32 v{fr+4+u}, v{ld+4*u+2}, v{ld+4*u}, s61")
        e(f"v_perm_b32 v{fr+8+u}, v{ld+4*u+3}, v{ld+4*u+1}, s60")
        e(f"v_perm_b32 v{fr+12+u}, v{ld+4*u+3}, v{ld+4*u+1}, s61")
def mfma_kb(fr, af, acc, hb, first):
    for j in range(4):
        a=acc+(hb*4+j)*4
        e(f"v_mfma_f32_16x16x32_bf16 {vr(a)}, {vr(af)}, {vr(fr+4*j)}, {'0' if first else vr(a)}")
def combine64(acc, T, slot_sreg_code, base):
    e("v_lshrrev_b32 v6, 1, v1"); e("v_lshlrev_b32 v6, 11, v6"); e("v_and_b32 v7, 1, v1"); e("v_lshl_add_u32 v6, v7, 10, v6"); e("v_lshl_add_u32 v6, v2, 4, v6")
    slot_sreg_code(); e("v_add_u32 v6, s56, v6")
    e("s_mov_b32 s58, 0"); e("s_mov_b32 s59, -1"); e("s_nop 2")
    for c in range(4):
        for j in range(4): e(f"v_cndmask_b32 v{T+4*c+j}, v{acc+4*j+c}, v{acc+16+4*j+c}, s[58:59]")
    for c in range(4): e(f"ds_write_b128 v6, {vr(T+4*c)} offset:{base+256*c}")
    e("s_waitcnt lgkmcnt(0)")
def final_sum64(dst, T, nslots, base, half_sreg):
    e("v_lshrrev_b32 v6, 3, v0"); e("v_lshlrev_b32 v6, 8, v6"); e("v_and_b32 v7, 7, v0"); e("v_lshl_add_u32 v6, v7, 4, v6"); e(f"s_lshl_b32 s56, {half_sreg}, 7"); e("v_add_u32 v6, s56, v6")
    for k in range(nslots): e(f"ds_read_b128 {vr(T+4*k)}, v6 offset:{base+2048*k}")
    e("s_waitcnt lgkmcnt(0)")
    regs=[T+4*k for k in range(nslots)]
    while len(regs)>1:
        nr=[]
        for i in range(0,len(regs)-1,2):
            d = dst if len(regs)==2 else regs[i]
            for c in range(4): e(f"v_add_f32 v{d+c}, v{regs[i]+c}, v{regs[i+1]+c}")
            nr.append(d)
        if len(regs)%2: nr.append(regs[-1])
        regs=nr
def lds_sync_arrive():
    e("v_mov_b32 v6, s31"); e("s_lshl_b32 s56, s3, 2"); e("v_mov_b32 v7, s56")
    e(f"ds_write_b32 v7, v6 offset:{LDS_FLG}")
def lds_sync_wait(tv):
    e("v_mov_b32 v7, 0")
    lp=g.newlab("Lpoll"); g.lab(lp)
    e(f"ds_read_b128 {vr(tv)}, v7 offset:{LDS_FLG}")
    e("s_waitcnt lgkmcnt(0)")
    tag_check([tv,tv+1,tv+2,tv+3])
    poll_tail(lp,0)
def silu_pair(lo,hi,t0,t1):
    nl=0xbfb8aa3b
    e(f"v_mul_f32 v{t0}, 0x{nl:x}, v{lo}"); e(f"v_mul_f32 v{t1}, 0x{nl:x}, v{hi}")
    e(f"v_exp_f32 v{t0}, v{t0}"); e(f"v_exp_f32 v{t1}, v{t1}")
    e("s_nop 0")
    e(f"v_add_f32 v{t0}, 1.0, v{t0}"); e(f"v_add_f32 v{t1}, 1.0, v{t1}")
    e(f"v_rcp_f32 v{t0}, v{t0}"); e(f"v_rcp_f32 v{t1}, v{t1}")
    e("s_nop 0")
    e(f"v_mul_f32 v{lo}, v{lo}, v{t0}"); e(f"v_mul_f32 v{hi}, v{hi}, v{t1}")
def unpack(src,lo,hi):
    e(f"v_lshlrev_b32 v{lo}, 16, v{src}"); e(f"v_and_b32 v{hi}, 0xffff0000, v{src}")
def round_pair(a,b,t):
    e(f"v_cvt_pk_bf16_f32 v{t}, v{a}, v{b}"); unpack(t,a,b)
def xor_reduce_add_345(v,t):
    e("s_nop 1")
    e(f"v_add_f32_dpp v{v}, v{v}, v{v} row_ror:8 row_mask:0xf bank_mask:0xf")
    e(f"v_mov_b32 v{t}, v{v}"); e("s_nop 1"); e(f"v_permlane16_swap_b32 v{v}, v{t}"); e("s_nop 1"); e(f"v_add_f32 v{v}, v{v}, v{t}")
    e(f"v_mov_b32 v{t}, v{v}"); e("s_nop 1"); e(f"v_permlane32_swap_b32 v{v}, v{t}"); e("s_nop 1"); e(f"v_add_f32 v{v}, v{v}, v{t}")
def stats_finish(vs, vq, vmean, vrs, t):
    inv=f2u(1.0/640)
    e(f"v_mul_f32 v{vs}, 0x{inv:x}, v{vs}"); e(f"v_mul_f32 v{vq}, 0x{inv:x}, v{vq}")
    e(f"v_fma_f32 v{vq}, -v{vs}, v{vs}, v{vq}")
    e(f"v_max_f32 v{vq}, 0, v{vq}")
    e(f"v_cvt_pk_bf16_f32 v{t}, v{vs}, v{vq}")
    unpack(t, vmean, vq)
    e(f"v_add_f32 v{vq}, 0x{f2u(1e-5):x}, v{vq}")
    e(f"v_cvt_pk_bf16_f32 v{t}, v{vq}, v{vq}"); e(f"v_lshlrev_b32 v{vq}, 16, v{t}")
    e(f"v_sqrt_f32 v{vq}, v{vq}"); e("s_nop 0")
    e(f"v_cvt_pk_bf16_f32 v{t}, v{vq}, v{vq}"); e(f"v_lshlrev_b32 v{vq}, 16, v{t}")
    e(f"v_rcp_f32 v{vrs}, v{vq}"); e("s_nop 0")
def sentinel_check(regs):
    e(f"v_cmp_eq_u32 vcc, -1, v{regs[0]}")
    for k in regs[1:]: e(f"v_cmp_eq_u32 s[58:59], -1, v{k}"); e("s_or_b64 vcc, vcc, s[58:59]")
def tag_check(regs):
    e(f"v_cmp_ne_u32 vcc, s31, v{regs[0]}")
    for k in regs[1:]: e(f"v_cmp_ne_u32 s[58:59], s31, v{k}"); e("s_or_b64 vcc, vcc, s[58:59]")
def get_nonce(tv):
    e(f"v_mov_b32 v{tv+1}, 0")
    lp=g.newlab("Lpoll"); g.lab(lp)
    e(f"buffer_load_dword v{tv}, v{tv+1}, s[40:43], 0 offen sc1")
    e("s_waitcnt vmcnt(0)")
    e(f"v_cmp_eq_u32 vcc, 0, v{tv}")
    poll_tail(lp,1)
    e(f"v_readfirstlane_b32 s31, v{tv}")
    e("s_nop 1")
def poll_rdy_all(tv):
    sk=g.newlab("Lnordy"); e("s_cmp_lg_u32 s3, 0"); e(f"s_cbranch_scc1 {sk}")
    e(f"v_lshlrev_b32 v{tv+4}, 4, v0"); e(f"s_mov_b32 s56, {WS_RDY}")
    lp=g.newlab("Lpoll"); g.lab(lp)
    e(f"buffer_load_dwordx4 {vr(tv)}, v{tv+4}, s[36:39], s56 offen sc1")
    e("s_waitcnt vmcnt(0)")
    tag_check([tv,tv+1,tv+2,tv+3])
    poll_tail(lp,100)
    g.lab(sk)
def tagged_store_half(slot_code):
    e("v_cvt_pk_bf16_f32 v12, v8, v9"); e("v_cvt_pk_bf16_f32 v14, v10, v11"); e("v_mov_b32 v13, s31"); e("v_mov_b32 v15, s31")
    slot_code()
    e("buffer_store_dwordx4 v[12:15], v6, s[36:39], s56 offen sc1")
def p_finish(slot_code):
    lds_sync_arrive()
    stamp(1)
    l=g.newlab("Lpd_"); e("s_cmp_ge_u32 s3, 2"); e(f"s_cbranch_scc1 {l}")
    lds_sync_wait(20)
    final_sum64(8, 20, 8, LDS_RED, "s3")
    tagged_store_half(slot_code)
    stamp(2)
    g.lab(l)
def pair_w4t(rowstride):
    def f(t): e(f"s_add_u32 s56, s3, {4*t}"); e(f"s_mul_i32 s56, s56, {64*rowstride}")
    return f
AF=8; ACC=20; WR=52; FT=148; TT=164

l0=g.newlab("Lr"); e("s_cmp_lg_u32 s2, 255"); e(f"s_cbranch_scc1 {l0}"); e("s_cmp_lg_u32 s3, 3"); e(f"s_cbranch_scc1 {l0}")
e("s_memrealtime s[58:59]"); e("s_waitcnt lgkmcnt(0)"); e("s_or_b32 s58, s58, 1"); e("v_mov_b32 v8, s58"); e("v_mov_b32 v9, 0")
e("buffer_store_dword v8, v9, s[40:43], 0 offen sc1")
g.lab(l0)
e(f"s_cmp_ge_u32 s2, {OWB}"); e("s_cbranch_scc1 L_PNONE")
e(f"s_cmp_ge_u32 s2, {P2B}"); e("s_cbranch_scc1 L_P2")
g.c("---- P1")
srd(48,24,8*640*2)
e("s_lshl_b32 s56, s2, 7"); e("s_add_u32 s44, s26, s56"); e("s_addc_u32 s45, s27, 0"); e("s_sub_u32 s46, %d, s56"%(640*7680)); e("s_mov_b32 s47, 0x20000")
mk_vak(7); e("s_movk_i32 s57, 1280"); e("v_mul_lo_u32 v6, v3, s57"); e("v_add_u32 v6, v6, v7")
e("s_lshl_b32 s56, s3, 7")
for t in range(3): e(f"buffer_load_dwordx4 {vr(AF+4*t)}, v6, s[48:51], s56 offen offset:{512*t}")
wlane(7680)
wload64(3,7680,WR,pair_w4t(7680),{2:g_w2})
e("v_mov_b32 v7, 0"); e("buffer_load_dword v4, v7, s[40:43], 0 offen sc1")
l1=g.newlab("Lw"); l2=g.newlab("Lw")
e("s_cmp_ge_u32 s3, 2"); e(f"s_cbranch_scc1 {l1}"); e("s_waitcnt vmcnt(49)"); e(f"s_branch {l2}"); g.lab(l1); e("s_waitcnt vmcnt(33)"); g.lab(l2)
def p1_silu(t):
    for d in range(4):
        r_=AF+4*t+d
        unpack(r_,TT,TT+1); silu_pair(TT,TT+1,TT+2,TT+3); e(f"v_cvt_pk_bf16_f32 v{r_}, v{TT}, v{TT+1}")
p1_silu(0); p1_silu(1); guard3(lambda: p1_silu(2))
e("s_waitcnt vmcnt(0)")
def gemv64_raw(t):
    for hb in range(2):
        wperm64(WR+(2*t+hb)*16, FT); e("s_nop 1"); mfma_kb(FT, AF+4*t, ACC, hb, t==0)
gemv64_raw(0); gemv64_raw(1); guard3(lambda: gemv64_raw(2))
e("v_readfirstlane_b32 s31, v4")
combine64(ACC, WR, lambda: e("s_lshl_b32 s56, s3, 12"), LDS_RED)
e("s_cmp_lg_u32 s31, 0")
l=g.newlab("Lgn"); e(f"s_cbranch_scc1 {l}"); get_nonce(TT); g.lab(l)
p_finish(lambda: e("s_lshl_b32 s56, s2, 11"))
e("s_branch L_QWAIT")
g.lab("L_PNONE")
get_nonce(TT)
e("s_branch L_QWAIT")
g.lab("L_P2")
g.c("---- P2")
srd(48,8,8*640*2)
e(f"s_sub_u32 s69, s2, {P2B}"); e("s_lshl_b32 s56, s69, 7"); e("s_add_u32 s44, s14, s56"); e("s_addc_u32 s45, s15, 0"); e("s_sub_u32 s46, %d, s56"%(640*8192)); e("s_mov_b32 s47, 0x20000")
e("s_movk_i32 s57, 1280"); e("v_mul_lo_u32 v6, v3, s57")
e("v_lshrrev_b32 v7, 3, v2"); e("v_lshl_add_u32 v7, v1, 1, v7"); e("s_movk_i32 s57, 160"); e("v_mul_lo_u32 v7, v7, s57"); e("v_add_u32 v7, v7, v6")
XS=ACC
XS=20
WR2=68
for k in range(10): e(f"buffer_load_dwordx4 {vr(XS+4*k)}, v7, s[48:51], 0 offen offset:{16*k}")
mk_vak(5); e("v_add_u32 v6, v6, v5")
e("s_lshl_b32 s56, s3, 7")
for t in range(3): e(f"buffer_load_dwordx4 {vr(AF+4*t)}, v6, s[48:51], s56 offen offset:{512*t}")
wlane(8192)
wload64(3,8192,WR2,pair_w4t(8192),{2:g_w2})
l1=g.newlab("Lw"); l2=g.newlab("Lw")
e("s_cmp_ge_u32 s3, 2"); e(f"s_cbranch_scc1 {l1}"); e("s_waitcnt vmcnt(48)"); e(f"s_branch {l2}"); g.lab(l1); e("s_waitcnt vmcnt(32)"); g.lab(l2)
e(f"v_mov_b32 v{TT+2}, 0"); e(f"v_mov_b32 v{TT+3}, 0")
for k in range(40):
    unpack(XS+k,TT,TT+1)
    e(f"v_add_f32 v{TT+2}, v{TT+2}, v{TT}"); e(f"v_fmac_f32 v{TT+3}, v{TT}, v{TT}")
    e(f"v_add_f32 v{TT+2}, v{TT+2}, v{TT+1}"); e(f"v_fmac_f32 v{TT+3}, v{TT+1}, v{TT+1}")
xor_reduce_add_345(TT+2,TT); xor_reduce_add_345(TT+3,TT)
stats_finish(TT+2,TT+3,6,7,TT)
def p2_n(t):
    for d in range(4):
        r_=AF+4*t+d
        unpack(r_,TT,TT+1)
        e(f"v_sub_f32 v{TT}, v{TT}, v6"); e(f"v_sub_f32 v{TT+1}, v{TT+1}, v6"); round_pair(TT,TT+1,TT+2)
        e(f"v_mul_f32 v{TT}, v{TT}, v7"); e(f"v_mul_f32 v{TT+1}, v{TT+1}, v7")
        e(f"v_cvt_pk_bf16_f32 v{r_}, v{TT}, v{TT+1}")
p2_n(0); p2_n(1); guard3(lambda: p2_n(2))
get_nonce(TT)
stamp(2)
SA=20; CA=44
mk_vt(7)
e("s_lshl_b32 s56, s3, 11"); e("s_add_u32 s57, s56, 8192"); e("s_add_u32 s62, s56, 16384"); e("s_min_u32 s62, s62, %d"%(9*2048))
e("s_add_u32 s63, s56, %d"%(10*2048)); e("s_add_u32 s64, s57, %d"%(10*2048)); e("s_add_u32 s65, s62, %d"%(10*2048))
lp=g.newlab("Lpoll"); g.lab(lp)
for t,sg in enumerate(["s56","s57","s62"]):
    e(f"buffer_load_dwordx4 {vr(SA+8*t)}, v7, s[36:39], {sg} offen sc1"); e(f"buffer_load_dwordx4 {vr(SA+8*t+4)}, v7, s[36:39], {sg} offen offset:16 sc1")
for t,sg in enumerate(["s63","s64","s65"]):
    e(f"buffer_load_dwordx4 {vr(CA+8*t)}, v7, s[36:39], {sg} offen sc1"); e(f"buffer_load_dwordx4 {vr(CA+8*t+4)}, v7, s[36:39], {sg} offen offset:16 sc1")
e("s_waitcnt vmcnt(0)")
tag_check([SA+4*k+1 for k in range(12)])
poll_tail(lp,1)
def p2_h(t):
    for d in range(4):
        r_=AF+4*t+d
        unpack(r_,TT,TT+1)
        unpack(CA+8*t+2*d,6,7)
        e("v_add_f32 v6, 1.0, v6"); e("v_add_f32 v7, 1.0, v7"); round_pair(6,7,TT+2)
        e(f"v_mul_f32 v{TT}, v{TT}, v6"); e(f"v_mul_f32 v{TT+1}, v{TT+1}, v7"); round_pair(TT,TT+1,TT+2)
        unpack(SA+8*t+2*d,6,7)
        e(f"v_add_f32 v{TT}, v{TT}, v6"); e(f"v_add_f32 v{TT+1}, v{TT+1}, v7")
        e(f"v_cvt_pk_bf16_f32 v{r_}, v{TT}, v{TT+1}")
p2_h(0); p2_h(1); guard3(lambda: p2_h(2))
FT2=52
def gemv64_raw2(t):
    for hb in range(2):
        wperm64(WR2+(2*t+hb)*16, FT2); e("s_nop 1"); mfma_kb(FT2, AF+4*t, ACC, hb, t==0)
gemv64_raw2(0); gemv64_raw2(1); guard3(lambda: gemv64_raw2(2))
combine64(ACC, WR2, lambda: e("s_lshl_b32 s56, s3, 12"), LDS_RED)
p_finish(lambda: (e("s_lshl_b32 s56, s69, 11"), e(f"s_add_u32 s56, s56, {WS_Q}")))
g.lab("L_QWAIT")
l=g.newlab("Lqd"); e("s_cmp_lg_u32 s3, 2"); e(f"s_cbranch_scc1 {l}")
e("v_lshrrev_b32 v7, 5, v0"); e("v_lshlrev_b32 v7, 11, v7"); e("v_and_b32 v6, 31, v0"); e("v_lshl_add_u32 v7, v6, 3, v7")
e("s_lshl_b32 s56, s35, 12"); e("s_lshl_b32 s57, s34, 8"); e("s_add_u32 s56, s56, s57"); e(f"s_add_u32 s56, s56, {WS_Q}")
lp=g.newlab("Lpoll"); g.lab(lp)
e("buffer_load_dwordx2 v[8:9], v7, s[36:39], s56 offen sc1")
e("s_waitcnt vmcnt(0)")
e("v_cmp_ne_u32 vcc, s31, v9")
poll_tail(lp,2)
e("v_lshlrev_b32 v7, 2, v0"); e("v_mov_b32 v10, 24"); e("v_mov_b32 v11, 0")
e(f"ds_write_b32 v7, v8 offset:{LDS_Q}")
e(f"ds_write_b32 v11, v10 offset:{LDS_CNT}")
e("s_waitcnt lgkmcnt(0)")
e("v_mov_b32 v10, 1"); e(f"ds_write_b32 v11, v10 offset:{LDS_QRDY}")
g.lab(l)
stamp(3)
sk=g.newlab("Lnoreset"); e("s_cmp_lg_u32 s3, 3"); e(f"s_cbranch_scc1 {sk}")
for k in range(4): e(f"v_mov_b32 v{8+k}, -1")
e("v_lshlrev_b32 v12, 2, v0"); e("v_lshlrev_b32 v13, 3, v0"); e("v_lshlrev_b32 v14, 4, v0")
e("s_lshl_b32 s56, s35, 3"); e("s_add_u32 s56, s56, s34"); e("s_lshl_b32 s56, s56, 8"); e(f"s_add_u32 s56, s56, {WS_O}")
e("buffer_store_dword v8, v12, s[36:39], s56 offen sc1")
l2=g.newlab("Lr"); e(f"s_sub_u32 s56, s2, {E2B}"); e("s_cmp_ge_u32 s56, 27"); e(f"s_cbranch_scc1 {l2}")
e("s_lshl_b32 s56, s56, 10"); e(f"s_add_u32 s56, s56, {WS_H1}")
e("buffer_store_dwordx4 v[8:11], v14, s[36:39], s56 offen sc1")
g.lab(l2)
l2=g.newlab("Lr"); e(f"s_sub_u32 s56, s2, {E3B}"); e("s_cmp_ge_u32 s56, 20"); e(f"s_cbranch_scc1 {l2}")
e("s_lshl_b32 s56, s56, 9"); e(f"s_add_u32 s56, s56, {WS_X1}")
e("buffer_store_dwordx2 v[8:9], v13, s[36:39], s56 offen sc1")
g.lab(l2)
l3=g.newlab("Lr"); e(f"s_sub_u32 s56, s2, {OWB}"); e("s_cmp_ge_u32 s56, 80"); e(f"s_cbranch_scc1 {l3}")
e("s_lshl_b32 s56, s56, 11"); e(f"s_add_u32 s56, s56, {WS_X1P}")
e("buffer_store_dwordx4 v[8:11], v14, s[36:39], s56 offen sc1"); e("buffer_store_dwordx4 v[8:11], v14, s[36:39], s56 offen offset:1024 sc1")
g.lab(l3)
e("s_waitcnt vmcnt(0)")
e("v_mov_b32 v9, 0"); e("v_mov_b32 v8, s31"); e("s_lshl_b32 s56, s2, 2"); e(f"s_add_u32 s56, s56, {WS_RDY}")
e("s_mov_b64 s[58:59], exec"); e("s_mov_b64 exec, 1")
e("buffer_store_dword v8, v9, s[36:39], s56 offen sc1")
e("s_mov_b64 exec, s[58:59]")
g.lab(sk)
e(f"s_cmp_ge_u32 s2, {IDB}"); e("s_cbranch_scc1 L_WDONE")
e(f"s_cmp_ge_u32 s2, {E3B}"); e("s_cbranch_scc1 L_W3")
e(f"s_cmp_ge_u32 s2, {E2B}"); e("s_cbranch_scc1 L_W2")
e(f"s_cmp_lt_u32 s2, {OWB}"); e("s_cbranch_scc1 L_WDONE")
g.c("---- owner preload: idx=wg-OWB ; k8=idx/10, n10=idx%10 ; wave w: head 4k8+w -> rows 512k8+128w")
e(f"s_sub_u32 s69, s2, {OWB}"); e("s_mul_hi_u32 s66, s69, %d"%((1<<32)//10+1)); e("s_mul_i32 s67, s66, 10"); e("s_sub_u32 s67, s69, s67")
e("s_lshl_b32 s56, s67, 7"); e("s_add_u32 s44, s16, s56"); e("s_addc_u32 s45, s17, 0"); e("s_sub_u32 s46, %d, s56"%(4096*1280)); e("s_mov_b32 s47, 0x20000")
wlane(1280)
def own_pair(t): e("s_lshl_b32 s56, s66, 3"); e("s_lshl_b32 s57, s3, 1"); e("s_add_u32 s56, s56, s57"); e(f"s_add_u32 s56, s56, {t}"); e(f"s_mul_i32 s56, s56, {64*1280}")
wload64(2,1280,104,own_pair)
e("s_waitcnt vmcnt(0)")
for kb in range(4): wperm64(104+16*kb, 40+16*kb)
poll_rdy_all(8)
e("s_branch L_WDONE")
g.lab("L_W2")
def e2_preload():
    e(f"s_sub_u32 s57, s2, {E2B}"); e("s_lshl_b32 s56, s57, 7"); e("s_add_u32 s44, s20, s56"); e("s_addc_u32 s45, s21, 0"); e("s_sub_u32 s46, %d, s56"%(640*3456)); e("s_mov_b32 s47, 0x20000")
    wlane(3456)
    def pr(t): e(f"s_mul_i32 s56, s68, {64*3456}")
    wload64(1,3456,8,pr)
    mk_vt(7)
    e("s_lshl_b32 s56, s68, 11")
    lp=g.newlab("Lpoll"); g.lab(lp)
    for q_,pb in enumerate([30,40]):
        e(f"s_add_u32 s57, s56, {pb*2048}"); e(f"buffer_load_dwordx4 {vr(72+8*q_)}, v7, s[36:39], s57 offen sc1"); e(f"buffer_load_dwordx4 {vr(72+8*q_+4)}, v7, s[36:39], s57 offen offset:16 sc1")
    e("s_waitcnt vmcnt(0)")
    tag_check([73+4*k for k in range(4)])
    poll_tail(lp,100)
    wperm64(8,40); wperm64(24,56)
    for d in range(4):
        unpack(72+2*d,100+2*d,101+2*d)
        unpack(80+2*d,108+2*d,109+2*d)
        e(f"v_add_f32 v{108+2*d}, 1.0, v{108+2*d}"); e(f"v_add_f32 v{109+2*d}, 1.0, v{109+2*d}"); round_pair(108+2*d,109+2*d,8)
    mk_vx1(4)
def e2_work():
    idle=g.newlab("Le2idle"); idle2=g.newlab("Le2idle")
    e("s_cmp_ge_u32 s68, 10"); e(f"s_cbranch_scc1 {idle}")
    e("s_lshl_b32 s56, s68, 10"); e(f"s_add_u32 s56, s56, {WS_X1}")
    lp=g.newlab("Lpoll"); g.lab(lp)
    e("buffer_load_dwordx4 v[16:19], v4, s[36:39], s56 offen sc1")
    e("s_waitcnt vmcnt(0)")
    sentinel_check([16,17,18,19])
    poll_tail(lp,0)
    stamp(6)
    for d in range(4): unpack(16+d,8+2*d,9+2*d)
    e("v_add_f32 v32, v8, v9"); e("v_mul_f32 v33, v8, v8"); e("v_fmac_f32 v33, v9, v9")
    for d in range(1,4):
        a=8+2*d; b=a+1
        e(f"v_add_f32 v32, v32, v{a}"); e(f"v_fmac_f32 v33, v{a}, v{a}"); e(f"v_add_f32 v32, v32, v{b}"); e(f"v_fmac_f32 v33, v{b}, v{b}")
    xor_reduce_add_345(32,34); xor_reduce_add_345(33,34)
    e("v_lshlrev_b32 v7, 3, v3"); e("s_lshl_b32 s56, s68, 6"); e("v_add_u32 v7, s56, v7")
    e(f"ds_write_b64 v7, v[32:33] offset:{LDS_ST2}")
    e("s_waitcnt lgkmcnt(0)")
    g.lab(idle)
    e("s_barrier")
    stamp(7)
    e("s_cmp_ge_u32 s68, 10"); e(f"s_cbranch_scc1 {idle2}")
    e("v_lshlrev_b32 v7, 3, v3")
    for w in range(10): e(f"ds_read_b64 {vr(116+2*w,2)}, v7 offset:{LDS_ST2+64*w}")
    e("s_waitcnt lgkmcnt(0)")
    for w in range(5): e(f"v_add_f32 v{116+4*w}, v{116+4*w}, v{118+4*w}"); e(f"v_add_f32 v{117+4*w}, v{117+4*w}, v{119+4*w}")
    e("v_add_f32 v116, v116, v120"); e("v_add_f32 v117, v117, v121"); e("v_add_f32 v124, v124, v128"); e("v_add_f32 v125, v125, v129")
    e("v_add_f32 v116, v116, v124"); e("v_add_f32 v117, v117, v125"); e("v_add_f32 v32, v116, v132"); e("v_add_f32 v33, v117, v133")
    stats_finish(32,33,36,37,34)
    for d in range(4):
        a=8+2*d; b=a+1
        e(f"v_sub_f32 v{a}, v{a}, v36"); e(f"v_sub_f32 v{b}, v{b}, v36"); round_pair(a,b,34)
        e(f"v_mul_f32 v{a}, v{a}, v37"); e(f"v_mul_f32 v{b}, v{b}, v37"); round_pair(a,b,34)
        e(f"v_mul_f32 v{a}, v{a}, v{108+2*d}"); e(f"v_mul_f32 v{b}, v{b}, v{109+2*d}"); round_pair(a,b,34)
        e(f"v_add_f32 v{a}, v{a}, v{100+2*d}"); e(f"v_add_f32 v{b}, v{b}, v{101+2*d}")
        e(f"v_cvt_pk_bf16_f32 v{16+d}, v{a}, v{b}")
    e("s_nop 1")
    mfma_kb(40,16,116,0,True); mfma_kb(56,16,116,1,True)
    combine64(116, 8, lambda: e("s_lshl_b32 s56, s68, 12"), LDS_ACC)
    g.lab(idle2)
    e("s_barrier")
    stamp(8)
    e("s_cmp_ge_u32 s68, 4"); e("s_cbranch_scc1 L_END")
    e("v_lshlrev_b32 v6, 3, v0"); e("s_lshl_b32 s56, s68, 9"); e("v_add_u32 v6, s56, v6")
    for k in range(20): e(f"ds_read_b64 {vr(40+2*k,2)}, v6 offset:{LDS_ACC+2048*k}")
    e("s_waitcnt lgkmcnt(0)")
    regs=[40+2*k for k in range(20)]
    while len(regs)>1:
        nr=[]
        for i in range(0,len(regs)-1,2):
            for c in range(2): e(f"v_add_f32 v{regs[i]+c}, v{regs[i]+c}, v{regs[i+1]+c}")
            nr.append(regs[i])
        if len(regs)%2: nr.append(regs[-1])
        regs=nr
    round_pair(40,41,12)
    silu_pair(40,41,12,13)
    e("v_cvt_pk_bf16_f32 v8, v40, v41"); e("v_min_u32 v8, 0xfffeffff, v8")
    e("v_lshlrev_b32 v6, 2, v0"); e(f"s_sub_u32 s56, s2, {E2B}"); e("s_lshl_b32 s56, s56, 10"); e("s_lshl_b32 s57, s68, 8"); e("s_add_u32 s56, s56, s57"); e(f"s_add_u32 s56, s56, {WS_H1}")
    e("buffer_store_dword v8, v6, s[36:39], s56 offen sc1")
    e("s_branch L_END")
e("s_mov_b32 s68, s3")
e2_preload()
poll_rdy_all(152)
l=g.newlab("Lz"); e("s_cmp_lg_u32 s3, 3"); e(f"s_cbranch_scc1 {l}")
e("v_mov_b32 v8, s31"); e("v_mov_b32 v6, 0"); e(f"ds_write_b32 v6, v8 offset:{LDS_NONCE}")
e("s_waitcnt lgkmcnt(0)")
g.lab(l)
e("s_branch L_WDONE")
g.lab("L_W3")
e(f"s_sub_u32 s57, s2, {E3B}"); e("s_lshl_b32 s56, s57, 6"); e("s_add_u32 s44, s22, s56"); e("s_addc_u32 s45, s23, 0"); e("s_sub_u32 s46, %d, s56"%(1728*1280)); e("s_mov_b32 s47, 0x20000")
e("s_movk_i32 s57, %d"%(8*1280)); e("v_mul_lo_u32 v5, v1, s57"); e("v_lshl_add_u32 v5, v2, 2, v5")
W3=40
def wperm32(ld, fr):
    for u in range(4):
        e(f"v_perm_b32 v{fr+u}, v{ld+4+u}, v{ld+u}, s60"); e(f"v_perm_b32 v{fr+4+u}, v{ld+4+u}, v{ld+u}, s61")
for t2 in range(4):
    ts=[t for t in (2*t2,2*t2+1) if t<7]
    for ti,t in enumerate(ts):
        sk=None
        if t==6: sk=g.newlab("Lsk7"); g_w3(sk)
        e(f"s_add_u32 s56, s3, {4*t}"); e(f"s_mul_i32 s56, s56, {64*1280}")
        for hb in range(2):
            for i in range(8):
                e(f"buffer_load_dword v{8+ti*16+hb*8+(i>>1)+4*(i&1)}, v5, s[44:47], s56 offen {WNT}")
                e(f"s_add_u32 s56, s56, {1280 if i<7 else 1280*25}")
        if sk: g.lab(sk)
    e("s_waitcnt vmcnt(0)")
    for ti,t in enumerate(ts):
        sk=None
        if t==6: sk=g.newlab("Lsk7"); g_w3(sk)
        wperm32(8+ti*16, W3+16*t); wperm32(8+ti*16+8, W3+16*t+8)
        if sk: g.lab(sk)
poll_rdy_all(8)
e("s_cmp_lg_u32 s3, 3"); e("s_cbranch_scc1 L_WDONE")
srd(48,8,8*640*2)
e("v_lshrrev_b32 v6, 3, v0"); e("v_and_b32 v7, 7, v0"); e("v_lshlrev_b32 v7, 3, v7")
e("s_movk_i32 s57, 1280"); e("v_mul_lo_u32 v8, v6, s57"); e("v_add_u32 v8, v8, v7")
e(f"s_sub_u32 s57, s2, {E3B}"); e("s_lshl_b32 s56, s57, 6")
e("buffer_load_dwordx2 v[144:145], v8, s[48:51], s56 offen")
e("v_lshlrev_b32 v9, 8, v6"); e("v_lshl_add_u32 v9, v7, 1, v9")
e("s_lshr_b32 s56, s57, 1"); e("s_lshl_b32 s56, s56, 11"); e("s_and_b32 s57, s57, 1"); e("s_lshl_b32 s57, s57, 7"); e("s_add_u32 s56, s56, s57")
e(f"s_add_u32 s57, s56, {20*2048}"); e(f"s_add_u32 s56, s56, {50*2048}")
lp=g.newlab("Lpoll"); g.lab(lp)
e("buffer_load_dwordx4 v[136:139], v9, s[36:39], s57 offen sc1"); e("buffer_load_dwordx4 v[140:143], v9, s[36:39], s56 offen sc1")
e("s_waitcnt vmcnt(0)")
tag_check([137,141])
poll_tail(lp,100)
e("v_mov_b32 v146, v136"); e("v_mov_b32 v147, v138"); e("v_mov_b32 v148, v140"); e("v_mov_b32 v149, v142")
g.lab("L_WDONE")
stamp(4)
e("s_barrier")
stamp(5)
g.c("---- merge partials (wave 0)")
l=g.newlab("Lmd"); e("s_cmp_lg_u32 s3, 0"); e(f"s_cbranch_scc1 {l}")
M=8
e("v_lshlrev_b32 v6, 3, v0"); e("v_mov_b32 v7, 0")
for w in range(8): e(f"ds_read_b64 {vr(M+2*w,2)}, v6 offset:{LDS_PART+512*w}")
for k in range(4): e(f"ds_read_b128 {vr(24+4*k)}, v7 offset:{LDS_ML+16*k}")
e("s_waitcnt lgkmcnt(0)")
e("v_max3_f32 v6, v24, v26, v28"); e("v_max3_f32 v6, v6, v30, v32"); e("v_max3_f32 v6, v6, v34, v36"); e("v_max_f32 v6, v6, v38")
e(f"s_mov_b32 s57, 0x{f2u(C1):x}")
for w in range(8): m=24+2*w; e(f"v_sub_f32 v{m}, v{m}, v6")
for w in range(8): m=24+2*w; e(f"v_mul_f32 v{m}, s57, v{m}")
for w in range(8): m=24+2*w; e(f"v_exp_f32 v{m}, v{m}")
e("s_nop 0")
e("v_mul_f32 v7, v24, v25"); e("v_mul_f32 v156, v8, v24"); e("v_mul_f32 v157, v9, v24")
for w in range(1,8):
    m=24+2*w; e(f"v_fmac_f32 v7, v{m}, v{m+1}"); e(f"v_fmac_f32 v156, v{M+2*w}, v{m}"); e(f"v_fmac_f32 v157, v{M+2*w+1}, v{m}")
e("v_rcp_f32 v7, v7"); e("s_nop 0"); e("v_mul_f32 v156, v156, v7"); e("v_mul_f32 v157, v157, v7")
e("v_cvt_pk_bf16_f32 v156, v156, v157"); e("v_min_u32 v156, 0xfffeffff, v156")
e("s_lshl_b32 s56, s35, 3"); e("s_add_u32 s56, s56, s34"); e("s_lshl_b32 s56, s56, 8"); e(f"s_add_u32 s56, s56, {WS_O}")
e("v_lshlrev_b32 v6, 2, v0")
e("buffer_store_dword v156, v6, s[36:39], s56 offen sc1")
g.lab(l)
e(f"s_cmp_ge_u32 s2, {IDB}"); e("s_cbranch_scc1 L_END")
e(f"s_cmp_ge_u32 s2, {E3B}"); e("s_cbranch_scc1 L_E3")
e(f"s_cmp_ge_u32 s2, {E2B}"); e("s_cbranch_scc1 L_E2")
e(f"s_cmp_lt_u32 s2, {OWB}"); e("s_cbranch_scc1 L_END")
g.c("---- owner: gather o head 4k8+w (2 pairs)")
mk_vak(7); e("v_lshl_add_u32 v6, v3, 8, v7")
e("s_lshl_b32 s56, s66, 2"); e("s_add_u32 s56, s56, s3"); e("s_lshl_b32 s56, s56, 11"); e(f"s_add_u32 s56, s56, {WS_O}")
lp=g.newlab("Lpoll"); g.lab(lp)
for t in range(2): e(f"buffer_load_dwordx4 {vr(8+4*t)}, v6, s[36:39], s56 offen offset:{128*t} sc1")
e("s_waitcnt vmcnt(0)")
sentinel_check(list(range(8,16)))
poll_tail(lp,0)
stamp(6)
for t in range(2):
    for hb in range(2): mfma_kb(40+16*(2*t+hb), 8+4*t, 104, hb, t==0)
combine64(104, 136, lambda: e("s_lshl_b32 s56, s3, 12"), LDS_RED)
e("s_barrier")
e("s_cmp_ge_u32 s3, 2"); e("s_cbranch_scc1 L_END")
final_sum64(8, 20, 8, LDS_RED, "s3")
for k in range(4): e(f"v_min_u32 v{8+k}, 0xfffeffff, v{8+k}")
e("s_lshl_b32 s56, s69, 11"); e(f"s_add_u32 s56, s56, {WS_X1P}")
e("buffer_store_dwordx4 v[8:11], v6, s[36:39], s56 offen sc1")
e("s_branch L_END")
g.lab("L_E2")
e2_work()
g.lab("L_E3")
g.c("---- E3")
l=g.newlab("Lfin"); e("s_cmp_lg_u32 s3, 3"); e(f"s_cbranch_scc1 {l}")
e("v_lshrrev_b32 v6, 3, v0"); e("v_lshlrev_b32 v6, 8, v6"); e("v_and_b32 v7, 7, v0"); e("v_lshl_add_u32 v6, v7, 4, v6")
e(f"s_sub_u32 s57, s2, {E3B}"); e("s_lshr_b32 s56, s57, 1"); e("s_lshl_b32 s56, s56, 11"); e("s_and_b32 s57, s57, 1"); e("s_lshl_b32 s57, s57, 7"); e("s_add_u32 s56, s56, s57"); e(f"s_add_u32 s56, s56, {WS_X1P}")
for k8 in range(1,8): e(f"s_add_u32 s{61+k8}, s56, {k8*10*2048}")
lp=g.newlab("Lpoll"); g.lab(lp)
for k8 in range(8): e(f"buffer_load_dwordx4 {vr(8+4*k8)}, v6, s[36:39], {'s56' if k8==0 else 's%d'%(61+k8)} offen sc1")
e("s_waitcnt vmcnt(0)")
sentinel_check([8+4*k for k in range(8)])
poll_tail(lp,0)
for c in range(4):
    for k in range(4): e(f"v_add_f32 v{8+8*k+c}, v{8+8*k+c}, v{12+8*k+c}")
    e(f"v_add_f32 v{8+c}, v{8+c}, v{16+c}"); e(f"v_add_f32 v{24+c}, v{24+c}, v{32+c}"); e(f"v_add_f32 v{136+c}, v{8+c}, v{24+c}")
for d in range(2):
    a=136+2*d; b=137+2*d
    round_pair(a,b,24)
    unpack(146+d,25,26); e(f"v_mul_f32 v{a}, v{a}, v25"); e(f"v_mul_f32 v{b}, v{b}, v26"); round_pair(a,b,24)
    unpack(144+d,25,26); e(f"v_add_f32 v{a}, v{a}, v25"); e(f"v_add_f32 v{b}, v{b}, v26")
    e(f"v_cvt_pk_bf16_f32 v{28+d}, v{a}, v{b}"); unpack(28+d,a,b)
e("v_min_u32 v28, 0xfffeffff, v28"); e("v_min_u32 v29, 0xfffeffff, v29")
e("v_lshlrev_b32 v6, 3, v0"); e(f"s_sub_u32 s56, s2, {E3B}"); e("s_lshl_b32 s56, s56, 9"); e(f"s_add_u32 s56, s56, {WS_X1}")
e("buffer_store_dwordx2 v[28:29], v6, s[36:39], s56 offen sc1")
e("s_mov_b32 s61, 0x07060302")
stamp(7)
g.lab(l)
mk_vh(4)
e("s_lshl_b32 s56, s3, 10"); e(f"s_add_u32 s56, s56, {WS_H1}")
e(f"s_add_u32 s57, s3, 24"); e("s_min_u32 s57, s57, 26"); e("s_lshl_b32 s57, s57, 10"); e(f"s_add_u32 s57, s57, {WS_H1}")
e("s_add_u32 s62, s56, 4096"); e("s_add_u32 s63, s56, 8192"); e("s_add_u32 s64, s56, 12288"); e("s_add_u32 s65, s56, 16384"); e("s_add_u32 s66, s56, 20480")
lp=g.newlab("Lpoll"); g.lab(lp)
for t,sg in enumerate(["s56","s62","s63","s64","s65","s66","s57"]): e(f"buffer_load_dwordx4 {vr(8+4*t)}, v4, s[36:39], {sg} offen sc1")
e("s_waitcnt vmcnt(0)")
sentinel_check(list(range(8,36)))
poll_tail(lp,0)
stamp(6)
A3=152
for t in range(7):
    sk=None
    if t==6: sk=g.newlab("Lsk7"); g_w3(sk)
    for hb in range(2):
        for j in range(2):
            a=A3+(hb*2+j)*4
            e(f"v_mfma_f32_16x16x32_bf16 {vr(a)}, {vr(8+4*t)}, {vr(W3+16*t+8*hb+4*j)}, {'0' if t==0 else vr(a)}")
    if sk: g.lab(sk)
e("v_lshrrev_b32 v6, 1, v1"); e("v_lshlrev_b32 v6, 10, v6"); e("v_and_b32 v7, 1, v1"); e("v_lshl_add_u32 v6, v7, 9, v6"); e("v_lshl_add_u32 v6, v2, 3, v6")
e("s_lshl_b32 s56, s3, 11"); e("v_add_u32 v6, s56, v6")
e("s_mov_b32 s58, 0"); e("s_mov_b32 s59, -1"); e("s_nop 3")
for c in range(4):
    e(f"v_cndmask_b32 v{56+2*c}, v{A3+c}, v{A3+8+c}, s[58:59]"); e(f"v_cndmask_b32 v{57+2*c}, v{A3+4+c}, v{A3+12+c}, s[58:59]")
for c in range(4): e(f"ds_write_b64 v6, {vr(56+2*c,2)} offset:{LDS_RED+128*c}")
e("s_waitcnt lgkmcnt(0)")
e("s_barrier")
e("s_cmp_lg_u32 s3, 3"); e("s_cbranch_scc1 L_END")
e("v_lshlrev_b32 v6, 4, v0")
for k in range(8): e(f"ds_read_b128 {vr(8+4*k)}, v6 offset:{LDS_RED+1024*k}")
e("s_waitcnt lgkmcnt(0)")
for c in range(4):
    for k in range(4): e(f"v_add_f32 v{8+8*k+c}, v{8+8*k+c}, v{12+8*k+c}")
    e(f"v_add_f32 v{8+c}, v{8+c}, v{16+c}"); e(f"v_add_f32 v{24+c}, v{24+c}, v{32+c}"); e(f"v_add_f32 v{64+c}, v{8+c}, v{24+c}")
for d in range(2):
    a=136+2*d; b=137+2*d
    r0=64+2*d; r1=65+2*d
    round_pair(r0,r1,70)
    unpack(148+d,71,72); e(f"v_mul_f32 v{r0}, v{r0}, v71"); e(f"v_mul_f32 v{r1}, v{r1}, v72"); round_pair(r0,r1,70)
    e(f"v_add_f32 v{a}, v{a}, v{r0}"); e(f"v_add_f32 v{b}, v{b}, v{r1}")
    e(f"v_cvt_pk_bf16_f32 v{74+d}, v{a}, v{b}")
srd(48,28,8*640*2)
e("v_lshrrev_b32 v6, 3, v0"); e("s_movk_i32 s57, 1280"); e("v_mul_lo_u32 v6, v6, s57"); e("v_and_b32 v7, 7, v0"); e("v_lshl_add_u32 v6, v7, 3, v6")
e(f"s_sub_u32 s56, s2, {E3B}"); e("s_lshl_b32 s56, s56, 6")
e("buffer_store_dwordx2 v[74:75], v6, s[48:51], s56 offen")
e("s_branch L_END")
g.lab("L_STREAM")
g.c("================ streaming waves")
e("s_sub_u32 s3, s3, 4")
e("v_lshlrev_b32 v4, 8, v2"); e("v_lshl_add_u32 v4, v1, 4, v4")
e("v_lshlrev_b32 v1, 10, v1"); e("v_lshl_add_u32 v1, v2, 4, v1")
e("v_mov_b32 v0, v4")
e("s_waitcnt lgkmcnt(0)")
e("s_lshl_b32 s56, s2, 20"); e("s_lshr_b32 s57, s2, 12")
NREC = "0" if "nostream" in OPT else "0x100000"
e("s_add_u32 s36, s10, s56"); e("s_addc_u32 s37, s11, s57"); e(f"s_mov_b32 s38, {NREC}"); e("s_mov_b32 s39, 0x20000")
e("s_add_u32 s40, s12, s56"); e("s_addc_u32 s41, s13, s57"); e(f"s_mov_b32 s42, {NREC}"); e("s_mov_b32 s43, 0x20000")
U=[40,72,104,136]
NTF="nt"
def kload(ub, so, win=0, bar=False):
    e(f"s_add_u32 s46, {so}, 4096")
    for j in range(8):
        if bar and j==2: e("s_barrier")
        if win: e(f"s_waitcnt vmcnt({win-1})")
        e(f"buffer_load_dwordx4 {vr(ub+4*j)}, v0, s[36:39], {so if j<4 else 's46'} offen offset:{64*(j&3)} {NTF}")
def vload(ub, so, win=0):
    e(f"s_add_u32 s46, {so}, 4096")
    for i in range(8):
        if win: e(f"s_waitcnt vmcnt({win-1})")
        e(f"buffer_load_dwordx4 {vr(ub+4*i)}, v1, s[40:43], {so if i<4 else 's46'} offen offset:{256*(i&3)} {NTF}")
e("s_lshl_b32 s44, s3, 13"); e("s_add_u32 s45, s44, 65536"); e("s_add_u32 s47, s44, 131072")
e(f"s_lshl_b32 s54, s3, 14"); e(f"s_add_u32 s54, s54, {LDS_PF}")
def kload_lds(so, win):
    e(f"s_add_u32 s46, {so}, 4096")
    for j in range(8):
        e(f"s_add_u32 m0, s54, {1024*j-64*(j&3)}")
        e(f"s_waitcnt vmcnt({win-1})" if win else "s_nop 0")
        e(f"buffer_load_dwordx4 v0, s[36:39], {so if j<4 else 's46'} offen offset:{64*(j&3)} {NTF} lds")
def vload_lds(so, win):
    e(f"s_add_u32 s46, {so}, 4096")
    for i in range(8):
        e(f"s_add_u32 m0, s54, {8192+1024*i-256*(i&3)}")
        e(f"s_waitcnt vmcnt({win-1})" if win else "s_nop 0")
        e(f"buffer_load_dwordx4 v1, s[40:43], {so if i<4 else 's46'} offen offset:{256*(i&3)} {NTF} lds")
kload(U[0],"s44",WIN,bar=True); vload(U[1],"s44",WIN); kload_lds("s47",WIN); vload_lds("s47",WIN); kload(U[2],"s45",WIN); vload(U[3],"s45",WIN)
for j in range(8):
    m=(0x0001000100010001<<j)
    e(f"s_mov_b32 s{62+2*j}, 0x{m&0xffffffff:x}"); e(f"s_mov_b32 s{63+2*j}, 0x{m>>32:x}")
e("s_mov_b32 s60, 0x05040100"); e("s_mov_b32 s61, 0x07060302")
e(f"s_mov_b32 s52, 0x{f2u(C1):x}"); e("s_mov_b32 s53, 0x3f803f80")
e("s_mov_b32 s48, 0xff800000"); e("s_mov_b32 s49, 0")
for k in range(4): e(f"v_mov_b32 v{4+k}, 0")
e("v_mov_b32 v2, 0")
stamp(1)
e("v_mov_b32 v16, 0")
lq=g.newlab("Lqr"); g.lab(lq)
e(f"ds_read_b32 v17, v16 offset:{LDS_QRDY}"); e("s_waitcnt lgkmcnt(0)"); e("v_readfirstlane_b32 s56, v17"); e("s_nop 1"); e("s_cmp_lg_u32 s56, 0")
ld=g.newlab("Lqd"); e(f"s_cbranch_scc1 {ld}"); e("s_sleep 2"); e(f"s_branch {lq}"); g.lab(ld)
stamp(3)
e("v_mbcnt_lo_u32_b32 v16, -1, 0"); e("v_mbcnt_hi_u32_b32 v16, -1, v16"); e("v_lshrrev_b32 v16, 4, v16"); e("v_lshlrev_b32 v16, 4, v16")
for j in range(4): e(f"ds_read_b128 {vr(24+4*j)}, v16 offset:{LDS_Q+64*j}")
def grab():
    e(f"v_mov_b32 v16, {LDS_CNT}"); e("v_mov_b32 v17, 1")
    e("s_mov_b64 exec, 1"); e("ds_add_rtn_u32 v3, v16, v17"); e("s_mov_b64 exec, -1")
grab()
rare=[]
def lds_addr(d):
    e(f"v_mbcnt_lo_u32_b32 v{d}, -1, 0"); e(f"v_mbcnt_hi_u32_b32 v{d}, -1, v{d}"); e(f"v_lshlrev_b32 v{d}, 4, v{d}"); e(f"v_add_u32 v{d}, s54, v{d}")
def tile(KB,VB,idx,sl,kw="vmcnt(24) lgkmcnt(0)",vw="vmcnt(24)",mode="global",check=True):
    if check: e(f"s_cmp_ge_u32 {sl}, 0x100000"); e("s_cbranch_scc1 L_LOOPEND")
    e(f"s_waitcnt {kw}")
    for j in range(4):
        e(f"v_mfma_f32_16x16x32_bf16 v[8:11], {vr(KB+4*j)}, {vr(24+4*j)}, {'0' if j==0 else 'v[8:11]'}")
        e(f"v_mfma_f32_16x16x32_bf16 v[12:15], {vr(KB+16+4*j)}, {vr(24+4*j)}, {'0' if j==0 else 'v[12:15]'}")
        if j==0 and mode=="global": e(f"v_readfirstlane_b32 {sl}, v3")
    if mode=="global":
        e(f"s_lshl_b32 {sl}, {sl}, 13")
        kload(KB, sl)
        grab()
    else:
        lds_addr(16)
        e("s_waitcnt vmcnt(24)")
        for j in range(8): e(f"ds_read_b128 {vr(KB+4*j)}, v16 offset:{1024*j}")
    if "nocomp" in OPT and mode=="global":
        e("s_waitcnt vmcnt(24)"); vload(VB, sl); return
    e("v_max3_f32 v17, v8, v9, v10"); e("v_max3_f32 v17, v17, v11, v12"); e("v_max3_f32 v17, v17, v13, v14"); e("v_max_f32 v17, v17, v15")
    e("v_cmp_lt_f32 vcc, s48, v17")
    e(f"s_cbranch_vccnz L_RARE{idx}")
    g.lab(f"L_CONT{idx}")
    e("v_mov_b32 v16, s49")
    for k in range(8): e(f"v_fma_f32 v{8+k}, v{8+k}, s52, v16")
    for k in range(8): e(f"v_exp_f32 v{8+k}, v{8+k}")
    for u in range(4): e(f"v_cvt_pk_bf16_f32 v{8+u}, v{8+2*u}, v{9+2*u}")
    if vw: e(f"s_waitcnt {vw}")
    def T0(c):
        for u in range(4): e(f"v_perm_b32 v{16+u}, v{VB+8*u+4+c}, v{VB+8*u+c}, s60")
    def T1(c):
        for u in range(4): e(f"v_perm_b32 v{20+u}, v{VB+8*u+4+c}, v{VB+8*u+c}, s61")
    def Am(j):
        for u in range(4): e(f"v_cndmask_b32 v{12+u}, 0, v{8+u}, s[{62+2*j}:{63+2*j}]")
    T0(0)
    for u in range(4): e(f"v_dot2_f32_bf16 v2, v{8+u}, s53, v2")
    for c in range(4):
        Am(2*c); T1(c)
        if c==3 and mode=="global": vload(VB, sl)
        e("v_mfma_f32_16x16x32_bf16 v[4:7], v[12:15], v[16:19], v[4:7]")
        Am(2*c+1)
        if c<3: T0(c+1)
        else: e("s_nop 1")
        e("v_mfma_f32_16x16x32_bf16 v[4:7], v[12:15], v[20:23], v[4:7]")
    if mode=="lds":
        lds_addr(16)
        e("s_waitcnt vmcnt(16)")
        for i in range(8): e(f"ds_read_b128 {vr(VB+4*i)}, v16 offset:{8192+1024*i}")
    rare.append(idx)
tile(U[0],U[1],"a","s44",kw="vmcnt(40) lgkmcnt(0)",vw="vmcnt(24)",mode="lds",check=False)
tile(U[2],U[3],"b","s45",kw="vmcnt(8) lgkmcnt(0)",vw="vmcnt(8)",check=False)
tile(U[0],U[1],"c","s44",kw="lgkmcnt(0)",vw=None,check=False)
g.lab("L_LOOP")
tile(U[2],U[3],1,"s45"); tile(U[0],U[1],0,"s44")
e("s_branch L_LOOP")
g.lab("L_LOOPEND")
e("s_waitcnt lgkmcnt(0)")
stamp(4)
e("s_nop 7"); e("s_nop 3")
e("v_mbcnt_lo_u32_b32 v3, -1, 0"); e("v_mbcnt_hi_u32_b32 v3, -1, v3")
e("v_mov_b32 v17, v2"); e("s_nop 1"); e("v_permlane16_swap_b32 v2, v17"); e("s_nop 1"); e("v_add_f32 v2, v2, v17")
e("v_mov_b32 v17, v2"); e("s_nop 1"); e("v_permlane32_swap_b32 v2, v17"); e("s_nop 1"); e("v_add_f32 v19, v2, v17")
e("v_mov_b32 v18, s48")
e("v_and_b32 v16, 15, v3"); e("v_lshlrev_b32 v16, 5, v16"); e("v_lshrrev_b32 v17, 4, v3"); e("v_lshl_add_u32 v16, v17, 4, v16")
e("s_lshl_b32 s56, s3, 9"); e("v_add_u32 v16, s56, v16")
e("s_lshl_b32 s56, s3, 3"); e("v_mov_b32 v17, s56")
e("s_mov_b32 exec_hi, 0")
e(f"ds_write_b128 v16, v[4:7] offset:{LDS_PART}")
e(f"ds_write_b64 v17, v[18:19] offset:{LDS_ML}")
e("s_mov_b32 exec_hi, -1")
e("s_waitcnt lgkmcnt(0)")
e("s_barrier")
e(f"s_sub_u32 s56, s2, {E2B}"); e("s_cmp_ge_u32 s56, 27"); e("s_cbranch_scc1 L_END")
e("s_waitcnt vmcnt(0)")
e("v_mov_b32 v0, v3"); e("v_lshrrev_b32 v1, 4, v0"); e("v_and_b32 v2, 15, v0"); e("v_and_b32 v3, 7, v2")
e("s_add_u32 s68, s3, 4"); e("s_mov_b32 s30, 0")
srd(36,6,WS_SIZE)
e("v_mov_b32 v6, 0"); e(f"ds_read_b32 v7, v6 offset:{LDS_NONCE}"); e("s_waitcnt lgkmcnt(0)"); e("v_readfirstlane_b32 s31, v7")
e("s_mov_b32 s60, 0x05040100"); e("s_mov_b32 s61, 0x07060302")
l=g.newlab("Lnp"); e("s_cmp_ge_u32 s68, 10"); e(f"s_cbranch_scc1 {l}")
e2_preload()
g.lab(l)
e2_work()
for idx in rare:
    g.lab(f"L_RARE{idx}")
    e("v_mov_b32 v18, v17"); e("s_nop 1"); e("v_permlane16_swap_b32 v17, v18"); e("s_nop 1"); e("v_max_f32 v17, v17, v18")
    e("v_mov_b32 v18, v17"); e("s_nop 1"); e("v_permlane32_swap_b32 v17, v18"); e("s_nop 1"); e("v_max_f32 v17, v17, v18")
    e("v_max_f32 v17, s48, v17")
    e("v_sub_f32 v18, s48, v17"); e("v_mul_f32 v18, s52, v18"); e("v_exp_f32 v18, v18")
    e("v_mul_f32 v19, s52, v17"); e("v_sub_f32 v19, 0, v19")
    e("v_readfirstlane_b32 s48, v17"); e("v_readfirstlane_b32 s49, v19")
    for k in range(4): e(f"v_mul_f32 v{4+k}, v{4+k}, v18")
    e("v_mul_f32 v2, v2, v18")
    e("s_nop 1")
    e(f"s_branch L_CONT{idx}")
g.lab("L_END")
if DEBUG_STAMPS:
    e("s_mov_b64 exec, -1")
    stamp(11)
    e("s_memtime s[92:93]"); e("s_waitcnt lgkmcnt(0)"); e("s_mov_b32 s90, s92")
    srd(36,6,WS_SIZE)
    e("s_lshl_b32 s94, s2, 10"); e("s_lshl_b32 s95, s79, 6"); e("s_add_u32 s94, s94, s95"); e(f"s_add_u32 s94, s94, {WS_STAMP}")
    e("v_mov_b32 v1, 0")
    for k in range(12): e(f"v_mov_b32 v0, s{80+k}"); e(f"buffer_store_dword v0, v1, s[36:39], s94 offen offset:{4*k}")
g.lab("L_EXIT")
e("s_endpgm")
g.L.append('.section .rodata,"a"'); g.L.append(".p2align 6"); g.L.append(f".amdhsa_kernel {KNAME}")
for x in ["  .amdhsa_next_free_vgpr 168","  .amdhsa_next_free_sgpr 96","  .amdhsa_accum_offset 168","  .amdhsa_group_segment_fixed_size 0","  .amdhsa_kernarg_size 104","  .amdhsa_user_sgpr_count 2","  .amdhsa_user_sgpr_kernarg_segment_ptr 1","  .amdhsa_system_sgpr_workgroup_id_x 1",".end_amdhsa_kernel"]: g.L.append(x)
open(sys.argv[1],"w").write("\n".join(g.L)+"\n")
```

```python
import sys, struct
KNAME = "adaLN_cond__mha_block_cached__dense_activation_silu__decode_kernel"
OPT = dict((a.split('=')+['1'])[:2] for a in sys.argv[2:])
DEBUG_STAMPS = "stamp" in OPT
WIN = int(OPT.get("win","12"))
WNT = "nt"
P1B=0; P2B=40; OWB=104; E2B=184; E3B=211; IDB=231
WS_MOD=0x0
WS_Q=0x20000
WS_O=0x40000
WS_X1P=0x50000
WS_H1=0x78000
WS_RDY=0x7F000
WS_X1=0x80000
WS_SIZE=0x100000
WS_STAMP=0x90000
LDS_RED=0
LDS_Q=16384
LDS_FLG=16640
LDS_CNT=16656
LDS_NONCE=16660
LDS_QRDY=16664
LDS_PART=16704
LDS_ML=LDS_PART+4096
LDS_ST2=LDS_ML+64
LDS_PF=24576
LDS_ACC=LDS_PF
LDS_SIZE=LDS_PF+131072
C1 = 0.08838834764831845*1.4426950408889634
def f2u(f): return struct.unpack('<I',struct.pack('<f',f))[0]
class G:
    def __init__(s): s.L=[]; s.n=0
    def e(s,x): s.L.append("  "+x)
    def lab(s,x): s.L.append(x+":")
    def newlab(s,p="L"): s.n+=1; return f"{p}_{s.n}"
    def c(s,x): s.L.append("  ; "+x)
g=G(); e=g.e
def stamp(idx):
    if not DEBUG_STAMPS: return
    e("s_memrealtime s[92:93]"); e("s_waitcnt lgkmcnt(0)"); e(f"s_mov_b32 s{80+idx}, s92")
def poll_tail(lp,sl):
    ld=g.newlab("Lpd"); e(f"s_cbranch_vccz {ld}")
    if sl: e(f"s_sleep {sl}")
    e("s_add_u32 s30, s30, 1"); e("s_cmp_gt_u32 s30, 400000"); e(f"s_cbranch_scc0 {lp}"); g.lab(ld)
def vr(b,n=4): return f"v[{b}:{b+n-1}]"
def srd(base, ptr, size):
    e(f"s_mov_b32 s{base}, s{ptr}"); e(f"s_mov_b32 s{base+1}, s{ptr+1}"); e(f"s_mov_b32 s{base+2}, {size}"); e(f"s_mov_b32 s{base+3}, 0x20000")
hdr = open('adaLN_cond__mha_block_cached__dense_activation_silu__decode.s.ref').read().split('\n')
for ln in hdr:
    if ln.startswith('; @launch'): break
    g.L.append(ln)
g.L.append(f"; @launch grid=(256,1,1) block=(768,1,1) lds={LDS_SIZE}")
g.L.append('.amdgcn_target "amdgcn-amd-amdhsa--gfx950"')
g.L.append(".text"); g.L.append(f".globl {KNAME}"); g.L.append(".p2align 8"); g.L.append(f".type {KNAME},@function"); g.lab(KNAME)
e("s_cmp_ge_u32 s2, 256"); e("s_cbranch_scc1 L_EXIT")
e("s_load_dwordx16 s[8:23], s[0:1], 0")
e("s_load_dwordx4 s[24:27], s[0:1], 64")
e("s_load_dwordx2 s[28:29], s[0:1], 80")
e("s_load_dwordx4 s[4:7], s[0:1], 88")
e("v_lshrrev_b32 v1, 6, v0")
e("v_and_b32 v0, 63, v0")
e("v_readfirstlane_b32 s3, v1")
e("s_lshr_b32 s34, s2, 5")
e("s_and_b32 s35, s2, 31")
e("s_mov_b32 s78, s2")
ROT=int(OPT.get("rot","0"))
if ROT: e(f"s_add_u32 s2, s2, {ROT}"); e("s_and_b32 s2, s2, 255")
e("v_lshrrev_b32 v1, 4, v0")
e("v_and_b32 v2, 15, v0")
e("s_mov_b32 s79, s3")
if DEBUG_STAMPS:
    for k in range(12): e(f"s_mov_b32 s{80+k}, 0")
    e("s_waitcnt lgkmcnt(0)")
    stamp(0)
    e("s_memtime s[92:93]"); e("s_waitcnt lgkmcnt(0)"); e("s_mov_b32 s89, s92")
e("s_cmp_ge_u32 s3, 4")
e("s_cbranch_scc1 L_STREAM")

e("s_setprio 3")
e("v_and_b32 v3, 7, v2"); e("v_mov_b32 v4, 0"); e("v_mov_b32 v5, 0")
e("s_mov_b32 s60, 0x05040100"); e("s_mov_b32 s61, 0x07060302"); e("s_mov_b32 s30, 0"); e("s_mov_b32 s31, 0")
l=g.newlab("Lq0"); e("s_cmp_lg_u32 s3, 1"); e(f"s_cbranch_scc1 {l}")
e("v_mov_b32 v6, 0"); e(f"ds_write_b32 v6, v6 offset:{LDS_QRDY}"); e("s_waitcnt lgkmcnt(0)")
g.lab(l)
e("s_waitcnt lgkmcnt(0)")
e("s_barrier")
srd(36,6,WS_SIZE); srd(40,4,256)

def mk_vak(d):
    e(f"v_lshrrev_b32 v{d}, 3, v2"); e(f"v_lshlrev_b32 v{d}, 6, v{d}"); e(f"v_lshl_add_u32 v{d}, v1, 4, v{d}")
def mk_vt(d):
    e(f"v_lshrrev_b32 v{d}, 3, v2"); e(f"v_lshlrev_b32 v{d}, 7, v{d}"); e(f"v_lshl_add_u32 v{d}, v3, 8, v{d}"); e(f"v_lshl_add_u32 v{d}, v1, 5, v{d}")
def mk_vh(d):
    e(f"v_lshrrev_b32 v{d}, 3, v2"); e(f"v_lshlrev_b32 v{d}, 6, v{d}"); e(f"v_lshl_add_u32 v{d}, v3, 7, v{d}"); e(f"v_lshl_add_u32 v{d}, v1, 4, v{d}")
def mk_vx1(d):
    e(f"v_lshrrev_b32 v{d}, 3, v2"); e(f"v_lshlrev_b32 v{d}, 9, v{d}"); e(f"v_lshl_add_u32 v{d}, v3, 6, v{d}"); e(f"v_lshl_add_u32 v{d}, v1, 4, v{d}")
def g_w2(skip): e("s_cmp_ge_u32 s3, 2"); e(f"s_cbranch_scc1 {skip}")
def g_w3(skip): e("s_cmp_eq_u32 s3, 3"); e(f"s_cbranch_scc1 {skip}")
def guard3(fn):
    skip=g.newlab("Lsk3"); g_w2(skip); fn(); g.lab(skip)
def wlane(rowstride):
    e(f"s_mov_b32 s57, {8*rowstride}"); e("v_mul_lo_u32 v5, v1, s57"); e("v_lshl_add_u32 v5, v2, 3, v5")
def wload64(npairs, rowstride, ldbase, pair_code, guards={}):
    for t in range(npairs):
        skip=None
        if t in guards: skip=g.newlab("Lskw"); guards[t](skip)
        pair_code(t)
        for hb in range(2):
            for i in range(8):
                e(f"buffer_load_dwordx2 {vr(ldbase+(2*t+hb)*16+2*i,2)}, v5, s[44:47], s56 offen {WNT}")
                if not (hb==1 and i==7): e(f"s_add_u32 s56, s56, {rowstride if i<7 else rowstride*25}")
        if skip: g.lab(skip)
def wperm64(ld, fr):
    for u in range(4):
        e(f"v_perm_b32 v{fr+u}, v{ld+4*u+2}, v{ld+4*u}, s60")
        e(f"v_perm_b32 v{fr+4+u}, v{ld+4*u+2}, v{ld+4*u}, s61")
        e(f"v_perm_b32 v{fr+8+u}, v{ld+4*u+3}, v{ld+4*u+1}, s60")
        e(f"v_perm_b32 v{fr+12+u}, v{ld+4*u+3}, v{ld+4*u+1}, s61")
def mfma_kb(fr, af, acc, hb, first):
    for j in range(4):
        a=acc+(hb*4+j)*4
        e(f"v_mfma_f32_16x16x32_bf16 {vr(a)}, {vr(af)}, {vr(fr+4*j)}, {'0' if first else vr(a)}")
def combine64(acc, T, slot_sreg_code, base):
    e("v_lshrrev_b32 v6, 1, v1"); e("v_lshlrev_b32 v6, 11, v6"); e("v_and_b32 v7, 1, v1"); e("v_lshl_add_u32 v6, v7, 10, v6"); e("v_lshl_add_u32 v6, v2, 4, v6")
    slot_sreg_code(); e("v_add_u32 v6, s56, v6")
    e("s_mov_b32 s58, 0"); e("s_mov_b32 s59, -1"); e("s_nop 2")
    for c in range(4):
        for j in range(4): e(f"v_cndmask_b32 v{T+4*c+j}, v{acc+4*j+c}, v{acc+16+4*j+c}, s[58:59]")
    for c in range(4): e(f"ds_write_b128 v6, {vr(T+4*c)} offset:{base+256*c}")
    e("s_waitcnt lgkmcnt(0)")
def final_sum64(dst, T, nslots, base, half_sreg):
    e("v_lshrrev_b32 v6, 3, v0"); e("v_lshlrev_b32 v6, 8, v6"); e("v_and_b32 v7, 7, v0"); e("v_lshl_add_u32 v6, v7, 4, v6"); e(f"s_lshl_b32 s56, {half_sreg}, 7"); e("v_add_u32 v6, s56, v6")
    for k in range(nslots): e(f"ds_read_b128 {vr(T+4*k)}, v6 offset:{base+2048*k}")
    e("s_waitcnt lgkmcnt(0)")
    regs=[T+4*k for k in range(nslots)]
    while len(regs)>1:
        nr=[]
        for i in range(0,len(regs)-1,2):
            d = dst if len(regs)==2 else regs[i]
            for c in range(4): e(f"v_add_f32 v{d+c}, v{regs[i]+c}, v{regs[i+1]+c}")
            nr.append(d)
        if len(regs)%2: nr.append(regs[-1])
        regs=nr
def lds_sync_arrive():
    e("v_mov_b32 v6, s31"); e("s_lshl_b32 s56, s3, 2"); e("v_mov_b32 v7, s56")
    e(f"ds_write_b32 v7, v6 offset:{LDS_FLG}")
def lds_sync_wait(tv):
    e("v_mov_b32 v7, 0")
    lp=g.newlab("Lpoll"); g.lab(lp)
    e(f"ds_read_b128 {vr(tv)}, v7 offset:{LDS_FLG}")
    e("s_waitcnt lgkmcnt(0)")
    tag_check([tv,tv+1,tv+2,tv+3])
    poll_tail(lp,0)
def silu_pair(lo,hi,t0,t1):
    nl=0xbfb8aa3b
    e(f"v_mul_f32 v{t0}, 0x{nl:x}, v{lo}"); e(f"v_mul_f32 v{t1}, 0x{nl:x}, v{hi}")
    e(f"v_exp_f32 v{t0}, v{t0}"); e(f"v_exp_f32 v{t1}, v{t1}")
    e("s_nop 0")
    e(f"v_add_f32 v{t0}, 1.0, v{t0}"); e(f"v_add_f32 v{t1}, 1.0, v{t1}")
    e(f"v_rcp_f32 v{t0}, v{t0}"); e(f"v_rcp_f32 v{t1}, v{t1}")
    e("s_nop 0")
    e(f"v_mul_f32 v{lo}, v{lo}, v{t0}"); e(f"v_mul_f32 v{hi}, v{hi}, v{t1}")
def unpack(src,lo,hi):
    e(f"v_lshlrev_b32 v{lo}, 16, v{src}"); e(f"v_and_b32 v{hi}, 0xffff0000, v{src}")
def round_pair(a,b,t):
    e(f"v_cvt_pk_bf16_f32 v{t}, v{a}, v{b}"); unpack(t,a,b)
def xor_reduce_add_345(v,t):
    e("s_nop 1")
    e(f"v_add_f32_dpp v{v}, v{v}, v{v} row_ror:8 row_mask:0xf bank_mask:0xf")
    e(f"v_mov_b32 v{t}, v{v}"); e("s_nop 1"); e(f"v_permlane16_swap_b32 v{v}, v{t}"); e("s_nop 1"); e(f"v_add_f32 v{v}, v{v}, v{t}")
    e(f"v_mov_b32 v{t}, v{v}"); e("s_nop 1"); e(f"v_permlane32_swap_b32 v{v}, v{t}"); e("s_nop 1"); e(f"v_add_f32 v{v}, v{v}, v{t}")
def stats_finish(vs, vq, vmean, vrs, t):
    inv=f2u(1.0/640)
    e(f"v_mul_f32 v{vs}, 0x{inv:x}, v{vs}"); e(f"v_mul_f32 v{vq}, 0x{inv:x}, v{vq}")
    e(f"v_fma_f32 v{vq}, -v{vs}, v{vs}, v{vq}")
    e(f"v_max_f32 v{vq}, 0, v{vq}")
    e(f"v_cvt_pk_bf16_f32 v{t}, v{vs}, v{vq}")
    unpack(t, vmean, vq)
    e(f"v_add_f32 v{vq}, 0x{f2u(1e-5):x}, v{vq}")
    e(f"v_cvt_pk_bf16_f32 v{t}, v{vq}, v{vq}"); e(f"v_lshlrev_b32 v{vq}, 16, v{t}")
    e(f"v_sqrt_f32 v{vq}, v{vq}"); e("s_nop 0")
    e(f"v_cvt_pk_bf16_f32 v{t}, v{vq}, v{vq}"); e(f"v_lshlrev_b32 v{vq}, 16, v{t}")
    e(f"v_rcp_f32 v{vrs}, v{vq}"); e("s_nop 0")
def sentinel_check(regs):
    e(f"v_cmp_eq_u32 vcc, -1, v{regs[0]}")
    for k in regs[1:]: e(f"v_cmp_eq_u32 s[58:59], -1, v{k}"); e("s_or_b64 vcc, vcc, s[58:59]")
def tag_check(regs):
    e(f"v_cmp_ne_u32 vcc, s31, v{regs[0]}")
    for k in regs[1:]: e(f"v_cmp_ne_u32 s[58:59], s31, v{k}"); e("s_or_b64 vcc, vcc, s[58:59]")
def get_nonce(tv):
    e(f"v_mov_b32 v{tv+1}, 0")
    lp=g.newlab("Lpoll"); g.lab(lp)
    e(f"buffer_load_dword v{tv}, v{tv+1}, s[40:43], 0 offen sc1")
    e("s_waitcnt vmcnt(0)")
    e(f"v_cmp_eq_u32 vcc, 0, v{tv}")
    poll_tail(lp,1)
    e(f"v_readfirstlane_b32 s31, v{tv}")
    e("s_nop 1")
def poll_rdy_all(tv):
    sk=g.newlab("Lnordy"); e("s_cmp_lg_u32 s3, 0"); e(f"s_cbranch_scc1 {sk}")
    e(f"v_lshlrev_b32 v{tv+4}, 4, v0"); e(f"s_mov_b32 s56, {WS_RDY}")
    lp=g.newlab("Lpoll"); g.lab(lp)
    e(f"buffer_load_dwordx4 {vr(tv)}, v{tv+4}, s[36:39], s56 offen sc1")
    e("s_waitcnt vmcnt(0)")
    tag_check([tv,tv+1,tv+2,tv+3])
    poll_tail(lp,100)
    g.lab(sk)
def tagged_store_half(slot_code):
    e("v_cvt_pk_bf16_f32 v12, v8, v9"); e("v_cvt_pk_bf16_f32 v14, v10, v11"); e("v_mov_b32 v13, s31"); e("v_mov_b32 v15, s31")
    slot_code()
    e("buffer_store_dwordx4 v[12:15], v6, s[36:39], s56 offen sc1")
def p_finish(slot_code):
    lds_sync_arrive()
    stamp(1)
    l=g.newlab("Lpd_"); e("s_cmp_ge_u32 s3, 2"); e(f"s_cbranch_scc1 {l}")
    lds_sync_wait(20)
    final_sum64(8, 20, 8, LDS_RED, "s3")
    tagged_store_half(slot_code)
    stamp(2)
    g.lab(l)
def pair_w4t(rowstride):
    def f(t): e(f"s_add_u32 s56, s3, {4*t}"); e(f"s_mul_i32 s56, s56, {64*rowstride}")
    return f
AF=8; ACC=20; WR=52; FT=148; TT=164

l0=g.newlab("Lr"); e("s_cmp_lg_u32 s2, 255"); e(f"s_cbranch_scc1 {l0}"); e("s_cmp_lg_u32 s3, 3"); e(f"s_cbranch_scc1 {l0}")
e("s_memrealtime s[58:59]"); e("s_waitcnt lgkmcnt(0)"); e("s_or_b32 s58, s58, 1"); e("v_mov_b32 v8, s58"); e("v_mov_b32 v9, 0")
e("buffer_store_dword v8, v9, s[40:43], 0 offen sc1")
g.lab(l0)
e(f"s_cmp_ge_u32 s2, {IDB}"); e("s_cbranch_scc1 L_P1C_A")
e(f"s_cmp_ge_u32 s2, {OWB+15}"); e("s_cbranch_scc1 L_PNONE")
e(f"s_cmp_ge_u32 s2, {OWB}"); e("s_cbranch_scc1 L_P1C_B")
e(f"s_cmp_ge_u32 s2, {P2B}"); e("s_cbranch_scc1 L_P2")
g.c("---- P1")
e("s_add_u32 s69, s2, 20")
srd(48,24,8*640*2)
e("s_lshl_b32 s56, s69, 7"); e("s_add_u32 s44, s26, s56"); e("s_addc_u32 s45, s27, 0"); e("s_sub_u32 s46, %d, s56"%(640*7680)); e("s_mov_b32 s47, 0x20000")
mk_vak(7); e("s_movk_i32 s57, 1280"); e("v_mul_lo_u32 v6, v3, s57"); e("v_add_u32 v6, v6, v7")
e("s_lshl_b32 s56, s3, 7")
for t in range(3): e(f"buffer_load_dwordx4 {vr(AF+4*t)}, v6, s[48:51], s56 offen offset:{512*t}")
wlane(7680)
wload64(3,7680,WR,pair_w4t(7680),{2:g_w2})
e("v_mov_b32 v7, 0"); e("buffer_load_dword v4, v7, s[40:43], 0 offen sc1")
l1=g.newlab("Lw"); l2=g.newlab("Lw")
e("s_cmp_ge_u32 s3, 2"); e(f"s_cbranch_scc1 {l1}"); e("s_waitcnt vmcnt(49)"); e(f"s_branch {l2}"); g.lab(l1); e("s_waitcnt vmcnt(33)"); g.lab(l2)
def p1_silu(t):
    for d in range(4):
        r_=AF+4*t+d
        unpack(r_,TT,TT+1); silu_pair(TT,TT+1,TT+2,TT+3); e(f"v_cvt_pk_bf16_f32 v{r_}, v{TT}, v{TT+1}")
p1_silu(0); p1_silu(1); guard3(lambda: p1_silu(2))
e("s_waitcnt vmcnt(0)")
def gemv64_raw(t):
    for hb in range(2):
        wperm64(WR+(2*t+hb)*16, FT); e("s_nop 1"); mfma_kb(FT, AF+4*t, ACC, hb, t==0)
gemv64_raw(0); gemv64_raw(1); guard3(lambda: gemv64_raw(2))
e("v_readfirstlane_b32 s31, v4")
combine64(ACC, WR, lambda: e("s_lshl_b32 s56, s3, 12"), LDS_RED)
e("s_cmp_lg_u32 s31, 0")
l=g.newlab("Lgn"); e(f"s_cbranch_scc1 {l}"); get_nonce(TT); g.lab(l)
p_finish(lambda: e("s_lshl_b32 s56, s69, 11"))
e("s_branch L_QWAIT")
g.lab("L_P1C_A"); e(f"s_sub_u32 s69, s2, {IDB}"); e("s_branch L_P1C")
g.lab("L_P1C_B"); e(f"s_sub_u32 s69, s2, {OWB-25}")
g.lab("L_P1C")
srd(48,24,8*640*2)
e("s_lshl_b32 s56, s69, 6"); e("s_add_u32 s44, s26, s56"); e("s_addc_u32 s45, s27, 0"); e("s_sub_u32 s46, %d, s56"%(640*7680)); e("s_mov_b32 s47, 0x20000")
mk_vak(7); e("s_movk_i32 s57, 1280"); e("v_mul_lo_u32 v6, v3, s57"); e("v_add_u32 v6, v6, v7")
e("s_lshl_b32 s56, s3, 7")
for t in range(3): e(f"buffer_load_dwordx4 {vr(AF+4*t)}, v6, s[48:51], s56 offen offset:{512*t}")
e("s_mov_b32 s57, %d"%(8*7680)); e("v_mul_lo_u32 v5, v1, s57"); e("v_lshl_add_u32 v5, v2, 2, v5")
for t in range(3):
    skip=None
    if t==2: skip=g.newlab("Lskw"); g_w2(skip)
    pair_w4t(7680)(t)
    for hb in range(2):
        for i in range(8):
            e(f"buffer_load_dword v{WR+(2*t+hb)*8+(i>>1)+4*(i&1)}, v5, s[44:47], s56 offen {WNT}")
            if not (hb==1 and i==7): e(f"s_add_u32 s56, s56, {7680 if i<7 else 7680*25}")
    if skip: g.lab(skip)
e("v_mov_b32 v7, 0"); e("buffer_load_dword v4, v7, s[40:43], 0 offen sc1")
l1=g.newlab("Lw"); l2=g.newlab("Lw")
e("s_cmp_ge_u32 s3, 2"); e(f"s_cbranch_scc1 {l1}"); e("s_waitcnt vmcnt(49)"); e(f"s_branch {l2}"); g.lab(l1); e("s_waitcnt vmcnt(33)"); g.lab(l2)
p1_silu(0); p1_silu(1); guard3(lambda: p1_silu(2))
e("s_waitcnt vmcnt(0)")
def gemv32_raw(t):
    for hb in range(2):
        ld=WR+(2*t+hb)*8
        for u in range(4):
            e(f"v_perm_b32 v{FT+u}, v{ld+4+u}, v{ld+u}, s60"); e(f"v_perm_b32 v{FT+4+u}, v{ld+4+u}, v{ld+u}, s61")
        e("s_nop 1")
        for j in range(2):
            a=ACC+(hb*2+j)*4
            e(f"v_mfma_f32_16x16x32_bf16 {vr(a)}, {vr(AF+4*t)}, {vr(FT+4*j)}, {'0' if t==0 else vr(a)}")
gemv32_raw(0); gemv32_raw(1); guard3(lambda: gemv32_raw(2))
e("v_readfirstlane_b32 s31, v4")
e("v_lshrrev_b32 v6, 1, v1"); e("v_lshlrev_b32 v6, 10, v6"); e("v_and_b32 v7, 1, v1"); e("v_lshl_add_u32 v6, v7, 9, v6"); e("v_lshl_add_u32 v6, v2, 3, v6")
e("s_lshl_b32 s56, s3, 11"); e("v_add_u32 v6, s56, v6")
e("s_mov_b32 s58, 0"); e("s_mov_b32 s59, -1"); e("s_nop 3")
for c in range(4):
    e(f"v_cndmask_b32 v{WR+2*c}, v{ACC+c}, v{ACC+8+c}, s[58:59]"); e(f"v_cndmask_b32 v{WR+2*c+1}, v{ACC+4+c}, v{ACC+12+c}, s[58:59]")
for c in range(4): e(f"ds_write_b64 v6, {vr(WR+2*c,2)} offset:{LDS_RED+128*c}")
e("s_waitcnt lgkmcnt(0)")
e("s_cmp_lg_u32 s31, 0")
l=g.newlab("Lgn"); e(f"s_cbranch_scc1 {l}"); get_nonce(TT); g.lab(l)
lds_sync_arrive()
stamp(1)
l=g.newlab("Lp1c"); e("s_cmp_lg_u32 s3, 0"); e(f"s_cbranch_scc1 {l}")
lds_sync_wait(20)
e("v_lshlrev_b32 v6, 4, v0")
for k in range(8): e(f"ds_read_b128 {vr(20+4*k)}, v6 offset:{LDS_RED+1024*k}")
e("s_waitcnt lgkmcnt(0)")
for c in range(4):
    for k in range(4): e(f"v_add_f32 v{20+8*k+c}, v{20+8*k+c}, v{24+8*k+c}")
    e(f"v_add_f32 v{20+c}, v{20+c}, v{28+c}"); e(f"v_add_f32 v{36+c}, v{36+c}, v{44+c}"); e(f"v_add_f32 v{8+c}, v{20+c}, v{36+c}")
e("v_lshrrev_b32 v6, 3, v0"); e("v_lshlrev_b32 v6, 8, v6"); e("v_and_b32 v7, 7, v0"); e("v_lshl_add_u32 v6, v7, 4, v6")
tagged_store_half(lambda: (e("s_lshr_b32 s56, s69, 1"), e("s_lshl_b32 s56, s56, 11"), e("s_and_b32 s57, s69, 1"), e("s_lshl_b32 s57, s57, 7"), e("s_add_u32 s56, s56, s57")))
stamp(2)
g.lab(l)
e("s_branch L_QWAIT")
g.lab("L_PNONE")
get_nonce(TT)
e("s_branch L_QWAIT")
g.lab("L_P2")
g.c("---- P2")
srd(48,8,8*640*2)
e(f"s_sub_u32 s69, s2, {P2B}"); e("s_lshl_b32 s56, s69, 7"); e("s_add_u32 s44, s14, s56"); e("s_addc_u32 s45, s15, 0"); e("s_sub_u32 s46, %d, s56"%(640*8192)); e("s_mov_b32 s47, 0x20000")
e("s_movk_i32 s57, 1280"); e("v_mul_lo_u32 v6, v3, s57")
e("v_lshrrev_b32 v7, 3, v2"); e("v_lshl_add_u32 v7, v1, 1, v7"); e("s_movk_i32 s57, 160"); e("v_mul_lo_u32 v7, v7, s57"); e("v_add_u32 v7, v7, v6")
XS=ACC
XS=20
WR2=68
for k in range(10): e(f"buffer_load_dwordx4 {vr(XS+4*k)}, v7, s[48:51], 0 offen offset:{16*k}")
mk_vak(5); e("v_add_u32 v6, v6, v5")
e("s_lshl_b32 s56, s3, 7")
for t in range(3): e(f"buffer_load_dwordx4 {vr(AF+4*t)}, v6, s[48:51], s56 offen offset:{512*t}")
P2S=int(OPT.get("p2s","8192"))
wlane(P2S)
wload64(3,P2S,WR2,pair_w4t(P2S),{2:g_w2})
l1=g.newlab("Lw"); l2=g.newlab("Lw")
e("s_cmp_ge_u32 s3, 2"); e(f"s_cbranch_scc1 {l1}"); e("s_waitcnt vmcnt(48)"); e(f"s_branch {l2}"); g.lab(l1); e("s_waitcnt vmcnt(32)"); g.lab(l2)
e(f"v_mov_b32 v{TT+2}, 0"); e(f"v_mov_b32 v{TT+3}, 0")
for k in range(40):
    unpack(XS+k,TT,TT+1)
    e(f"v_add_f32 v{TT+2}, v{TT+2}, v{TT}"); e(f"v_fmac_f32 v{TT+3}, v{TT}, v{TT}")
    e(f"v_add_f32 v{TT+2}, v{TT+2}, v{TT+1}"); e(f"v_fmac_f32 v{TT+3}, v{TT+1}, v{TT+1}")
xor_reduce_add_345(TT+2,TT); xor_reduce_add_345(TT+3,TT)
stats_finish(TT+2,TT+3,6,7,TT)
def p2_n(t):
    for d in range(4):
        r_=AF+4*t+d
        unpack(r_,TT,TT+1)
        e(f"v_sub_f32 v{TT}, v{TT}, v6"); e(f"v_sub_f32 v{TT+1}, v{TT+1}, v6"); round_pair(TT,TT+1,TT+2)
        e(f"v_mul_f32 v{TT}, v{TT}, v7"); e(f"v_mul_f32 v{TT+1}, v{TT+1}, v7")
        e(f"v_cvt_pk_bf16_f32 v{r_}, v{TT}, v{TT+1}")
p2_n(0); p2_n(1); guard3(lambda: p2_n(2))
get_nonce(TT)
stamp(2)
SA=20; CA=44
mk_vt(7)
e("s_lshl_b32 s56, s3, 11"); e("s_add_u32 s57, s56, 8192"); e("s_add_u32 s62, s56, 16384"); e("s_min_u32 s62, s62, %d"%(9*2048))
e("s_add_u32 s63, s56, %d"%(10*2048)); e("s_add_u32 s64, s57, %d"%(10*2048)); e("s_add_u32 s65, s62, %d"%(10*2048))
lp=g.newlab("Lpoll"); g.lab(lp)
for t,sg in enumerate(["s56","s57","s62"]):
    e(f"buffer_load_dwordx4 {vr(SA+8*t)}, v7, s[36:39], {sg} offen sc1"); e(f"buffer_load_dwordx4 {vr(SA+8*t+4)}, v7, s[36:39], {sg} offen offset:16 sc1")
for t,sg in enumerate(["s63","s64","s65"]):
    e(f"buffer_load_dwordx4 {vr(CA+8*t)}, v7, s[36:39], {sg} offen sc1"); e(f"buffer_load_dwordx4 {vr(CA+8*t+4)}, v7, s[36:39], {sg} offen offset:16 sc1")
e("s_waitcnt vmcnt(0)")
tag_check([SA+4*k+1 for k in range(12)])
poll_tail(lp,1)
def p2_h(t):
    for d in range(4):
        r_=AF+4*t+d
        unpack(r_,TT,TT+1)
        unpack(CA+8*t+2*d,6,7)
        e("v_add_f32 v6, 1.0, v6"); e("v_add_f32 v7, 1.0, v7"); round_pair(6,7,TT+2)
        e(f"v_mul_f32 v{TT}, v{TT}, v6"); e(f"v_mul_f32 v{TT+1}, v{TT+1}, v7"); round_pair(TT,TT+1,TT+2)
        unpack(SA+8*t+2*d,6,7)
        e(f"v_add_f32 v{TT}, v{TT}, v6"); e(f"v_add_f32 v{TT+1}, v{TT+1}, v7")
        e(f"v_cvt_pk_bf16_f32 v{r_}, v{TT}, v{TT+1}")
p2_h(0); p2_h(1); guard3(lambda: p2_h(2))
FT2=52
def gemv64_raw2(t):
    for hb in range(2):
        wperm64(WR2+(2*t+hb)*16, FT2); e("s_nop 1"); mfma_kb(FT2, AF+4*t, ACC, hb, t==0)
gemv64_raw2(0); gemv64_raw2(1); guard3(lambda: gemv64_raw2(2))
combine64(ACC, WR2, lambda: e("s_lshl_b32 s56, s3, 12"), LDS_RED)
p_finish(lambda: (e("s_lshl_b32 s56, s69, 11"), e(f"s_add_u32 s56, s56, {WS_Q}")))
g.lab("L_QWAIT")
l=g.newlab("Lqd"); e("s_cmp_lg_u32 s3, 2"); e(f"s_cbranch_scc1 {l}")
e("v_lshrrev_b32 v7, 5, v0"); e("v_lshlrev_b32 v7, 11, v7"); e("v_and_b32 v6, 31, v0"); e("v_lshl_add_u32 v7, v6, 3, v7")
e("s_lshl_b32 s56, s35, 12"); e("s_lshl_b32 s57, s34, 8"); e("s_add_u32 s56, s56, s57"); e(f"s_add_u32 s56, s56, {WS_Q}")
lp=g.newlab("Lpoll"); g.lab(lp)
e("buffer_load_dwordx2 v[8:9], v7, s[36:39], s56 offen sc1")
e("s_waitcnt vmcnt(0)")
e("v_cmp_ne_u32 vcc, s31, v9")
poll_tail(lp,2)
e("v_lshlrev_b32 v7, 2, v0"); e("v_mov_b32 v10, 24"); e("v_mov_b32 v11, 0")
e(f"ds_write_b32 v7, v8 offset:{LDS_Q}")
e(f"ds_write_b32 v11, v10 offset:{LDS_CNT}")
e("s_waitcnt lgkmcnt(0)")
e("v_mov_b32 v10, 1"); e(f"ds_write_b32 v11, v10 offset:{LDS_QRDY}")
g.lab(l)
stamp(3)
sk=g.newlab("Lnoreset"); e("s_cmp_lg_u32 s3, 3"); e(f"s_cbranch_scc1 {sk}")
for k in range(4): e(f"v_mov_b32 v{8+k}, -1")
e("v_lshlrev_b32 v12, 2, v0"); e("v_lshlrev_b32 v13, 3, v0"); e("v_lshlrev_b32 v14, 4, v0")
e("s_lshl_b32 s56, s35, 3"); e("s_add_u32 s56, s56, s34"); e("s_lshl_b32 s56, s56, 8"); e(f"s_add_u32 s56, s56, {WS_O}")
e("buffer_store_dword v8, v12, s[36:39], s56 offen sc1")
l2=g.newlab("Lr"); e(f"s_sub_u32 s56, s2, {E2B}"); e("s_cmp_ge_u32 s56, 27"); e(f"s_cbranch_scc1 {l2}")
e("s_lshl_b32 s56, s56, 10"); e(f"s_add_u32 s56, s56, {WS_H1}")
e("buffer_store_dwordx4 v[8:11], v14, s[36:39], s56 offen sc1")
g.lab(l2)
l2=g.newlab("Lr"); e(f"s_sub_u32 s56, s2, {E3B}"); e("s_cmp_ge_u32 s56, 20"); e(f"s_cbranch_scc1 {l2}")
e("s_lshl_b32 s56, s56, 9"); e(f"s_add_u32 s56, s56, {WS_X1}")
e("buffer_store_dwordx2 v[8:9], v13, s[36:39], s56 offen sc1")
g.lab(l2)
l3=g.newlab("Lr"); e(f"s_sub_u32 s56, s2, {OWB}"); e("s_cmp_ge_u32 s56, 80"); e(f"s_cbranch_scc1 {l3}")
e("s_lshl_b32 s56, s56, 11"); e(f"s_add_u32 s56, s56, {WS_X1P}")
e("buffer_store_dwordx4 v[8:11], v14, s[36:39], s56 offen sc1"); e("buffer_store_dwordx4 v[8:11], v14, s[36:39], s56 offen offset:1024 sc1")
g.lab(l3)
e("s_waitcnt vmcnt(0)")
e("v_mov_b32 v9, 0"); e("v_mov_b32 v8, s31"); e("s_lshl_b32 s56, s2, 2"); e(f"s_add_u32 s56, s56, {WS_RDY}")
e("s_mov_b64 s[58:59], exec"); e("s_mov_b64 exec, 1")
e("buffer_store_dword v8, v9, s[36:39], s56 offen sc1")
e("s_mov_b64 exec, s[58:59]")
g.lab(sk)
e(f"s_cmp_ge_u32 s2, {IDB}"); e("s_cbranch_scc1 L_WDONE")
e(f"s_cmp_ge_u32 s2, {E3B}"); e("s_cbranch_scc1 L_W3")
e(f"s_cmp_ge_u32 s2, {E2B}"); e("s_cbranch_scc1 L_W2")
e(f"s_cmp_lt_u32 s2, {OWB}"); e("s_cbranch_scc1 L_WDONE")
g.c("---- owner preload: idx=wg-OWB ; k8=idx/10, n10=idx%10 ; wave w: head 4k8+w -> rows 512k8+128w")
e(f"s_sub_u32 s69, s2, {OWB}"); e("s_mul_hi_u32 s66, s69, %d"%((1<<32)//10+1)); e("s_mul_i32 s67, s66, 10"); e("s_sub_u32 s67, s69, s67")
e("s_lshl_b32 s56, s67, 7"); e("s_add_u32 s44, s16, s56"); e("s_addc_u32 s45, s17, 0"); e("s_sub_u32 s46, %d, s56"%(4096*1280)); e("s_mov_b32 s47, 0x20000")
wlane(1280)
def own_pair(t): e("s_lshl_b32 s56, s66, 3"); e("s_lshl_b32 s57, s3, 1"); e("s_add_u32 s56, s56, s57"); e(f"s_add_u32 s56, s56, {t}"); e(f"s_mul_i32 s56, s56, {64*1280}")
wload64(2,1280,104,own_pair)
e("s_waitcnt vmcnt(0)")
for kb in range(4): wperm64(104+16*kb, 40+16*kb)
poll_rdy_all(8)
e("s_branch L_WDONE")
g.lab("L_W2")
def e2_preload():
    e(f"s_sub_u32 s57, s2, {E2B}"); e("s_lshl_b32 s56, s57, 7"); e("s_add_u32 s44, s20, s56"); e("s_addc_u32 s45, s21, 0"); e("s_sub_u32 s46, %d, s56"%(640*3456)); e("s_mov_b32 s47, 0x20000")
    wlane(3456)
    def pr(t): e(f"s_mul_i32 s56, s68, {64*3456}")
    wload64(1,3456,8,pr)
    mk_vt(7)
    e("s_lshl_b32 s56, s68, 11")
    lp=g.newlab("Lpoll"); g.lab(lp)
    for q_,pb in enumerate([30,40]):
        e(f"s_add_u32 s57, s56, {pb*2048}"); e(f"buffer_load_dwordx4 {vr(72+8*q_)}, v7, s[36:39], s57 offen sc1"); e(f"buffer_load_dwordx4 {vr(72+8*q_+4)}, v7, s[36:39], s57 offen offset:16 sc1")
    e("s_waitcnt vmcnt(0)")
    tag_check([73+4*k for k in range(4)])
    poll_tail(lp,100)
    wperm64(8,40); wperm64(24,56)
    for d in range(4):
        unpack(72+2*d,100+2*d,101+2*d)
        unpack(80+2*d,108+2*d,109+2*d)
        e(f"v_add_f32 v{108+2*d}, 1.0, v{108+2*d}"); e(f"v_add_f32 v{109+2*d}, 1.0, v{109+2*d}"); round_pair(108+2*d,109+2*d,8)
    mk_vx1(4)
def e2_work():
    idle=g.newlab("Le2idle"); idle2=g.newlab("Le2idle")
    e("s_cmp_ge_u32 s68, 10"); e(f"s_cbranch_scc1 {idle}")
    e("s_lshl_b32 s56, s68, 10"); e(f"s_add_u32 s56, s56, {WS_X1}")
    lp=g.newlab("Lpoll"); g.lab(lp)
    e("buffer_load_dwordx4 v[16:19], v4, s[36:39], s56 offen sc1")
    e("s_waitcnt vmcnt(0)")
    sentinel_check([16,17,18,19])
    poll_tail(lp,0)
    stamp(6)
    for d in range(4): unpack(16+d,8+2*d,9+2*d)
    e("v_add_f32 v32, v8, v9"); e("v_mul_f32 v33, v8, v8"); e("v_fmac_f32 v33, v9, v9")
    for d in range(1,4):
        a=8+2*d; b=a+1
        e(f"v_add_f32 v32, v32, v{a}"); e(f"v_fmac_f32 v33, v{a}, v{a}"); e(f"v_add_f32 v32, v32, v{b}"); e(f"v_fmac_f32 v33, v{b}, v{b}")
    xor_reduce_add_345(32,34); xor_reduce_add_345(33,34)
    e("v_lshlrev_b32 v7, 3, v3"); e("s_lshl_b32 s56, s68, 6"); e("v_add_u32 v7, s56, v7")
    e(f"ds_write_b64 v7, v[32:33] offset:{LDS_ST2}")
    e("s_waitcnt lgkmcnt(0)")
    g.lab(idle)
    e("s_barrier")
    stamp(7)
    e("s_cmp_ge_u32 s68, 10"); e(f"s_cbranch_scc1 {idle2}")
    e("v_lshlrev_b32 v7, 3, v3")
    for w in range(10): e(f"ds_read_b64 {vr(116+2*w,2)}, v7 offset:{LDS_ST2+64*w}")
    e("s_waitcnt lgkmcnt(0)")
    for w in range(5): e(f"v_add_f32 v{116+4*w}, v{116+4*w}, v{118+4*w}"); e(f"v_add_f32 v{117+4*w}, v{117+4*w}, v{119+4*w}")
    e("v_add_f32 v116, v116, v120"); e("v_add_f32 v117, v117, v121"); e("v_add_f32 v124, v124, v128"); e("v_add_f32 v125, v125, v129")
    e("v_add_f32 v116, v116, v124"); e("v_add_f32 v117, v117, v125"); e("v_add_f32 v32, v116, v132"); e("v_add_f32 v33, v117, v133")
    stats_finish(32,33,36,37,34)
    for d in range(4):
        a=8+2*d; b=a+1
        e(f"v_sub_f32 v{a}, v{a}, v36"); e(f"v_sub_f32 v{b}, v{b}, v36"); round_pair(a,b,34)
        e(f"v_mul_f32 v{a}, v{a}, v37"); e(f"v_mul_f32 v{b}, v{b}, v37"); round_pair(a,b,34)
        e(f"v_mul_f32 v{a}, v{a}, v{108+2*d}"); e(f"v_mul_f32 v{b}, v{b}, v{109+2*d}"); round_pair(a,b,34)
        e(f"v_add_f32 v{a}, v{a}, v{100+2*d}"); e(f"v_add_f32 v{b}, v{b}, v{101+2*d}")
        e(f"v_cvt_pk_bf16_f32 v{16+d}, v{a}, v{b}")
    e("s_nop 1")
    mfma_kb(40,16,116,0,True); mfma_kb(56,16,116,1,True)
    combine64(116, 8, lambda: e("s_lshl_b32 s56, s68, 12"), LDS_ACC)
    g.lab(idle2)
    e("s_barrier")
    stamp(8)
    e("s_cmp_ge_u32 s68, 4"); e("s_cbranch_scc1 L_END")
    e("v_lshlrev_b32 v6, 3, v0"); e("s_lshl_b32 s56, s68, 9"); e("v_add_u32 v6, s56, v6")
    for k in range(20): e(f"ds_read_b64 {vr(40+2*k,2)}, v6 offset:{LDS_ACC+2048*k}")
    e("s_waitcnt lgkmcnt(0)")
    regs=[40+2*k for k in range(20)]
    while len(regs)>1:
        nr=[]
        for i in range(0,len(regs)-1,2):
            for c in range(2): e(f"v_add_f32 v{regs[i]+c}, v{regs[i]+c}, v{regs[i+1]+c}")
            nr.append(regs[i])
        if len(regs)%2: nr.append(regs[-1])
        regs=nr
    round_pair(40,41,12)
    silu_pair(40,41,12,13)
    e("v_cvt_pk_bf16_f32 v8, v40, v41"); e("v_min_u32 v8, 0xfffeffff, v8")
    e("v_lshlrev_b32 v6, 2, v0"); e(f"s_sub_u32 s56, s2, {E2B}"); e("s_lshl_b32 s56, s56, 10"); e("s_lshl_b32 s57, s68, 8"); e("s_add_u32 s56, s56, s57"); e(f"s_add_u32 s56, s56, {WS_H1}")
    e("buffer_store_dword v8, v6, s[36:39], s56 offen sc1")
    e("s_branch L_END")
e("s_mov_b32 s68, s3")
e2_preload()
poll_rdy_all(152)
l=g.newlab("Lz"); e("s_cmp_lg_u32 s3, 3"); e(f"s_cbranch_scc1 {l}")
e("v_mov_b32 v8, s31"); e("v_mov_b32 v6, 0"); e(f"ds_write_b32 v6, v8 offset:{LDS_NONCE}")
e("s_waitcnt lgkmcnt(0)")
g.lab(l)
e("s_branch L_WDONE")
g.lab("L_W3")
e(f"s_sub_u32 s57, s2, {E3B}"); e("s_lshl_b32 s56, s57, 6"); e("s_add_u32 s44, s22, s56"); e("s_addc_u32 s45, s23, 0"); e("s_sub_u32 s46, %d, s56"%(1728*1280)); e("s_mov_b32 s47, 0x20000")
e("s_movk_i32 s57, %d"%(8*1280)); e("v_mul_lo_u32 v5, v1, s57"); e("v_lshl_add_u32 v5, v2, 2, v5")
W3=40
def wperm32(ld, fr):
    for u in range(4):
        e(f"v_perm_b32 v{fr+u}, v{ld+4+u}, v{ld+u}, s60"); e(f"v_perm_b32 v{fr+4+u}, v{ld+4+u}, v{ld+u}, s61")
for t2 in range(4):
    ts=[t for t in (2*t2,2*t2+1) if t<7]
    for ti,t in enumerate(ts):
        sk=None
        if t==6: sk=g.newlab("Lsk7"); g_w3(sk)
        e(f"s_add_u32 s56, s3, {4*t}"); e(f"s_mul_i32 s56, s56, {64*1280}")
        for hb in range(2):
            for i in range(8):
                e(f"buffer_load_dword v{8+ti*16+hb*8+(i>>1)+4*(i&1)}, v5, s[44:47], s56 offen {WNT}")
                e(f"s_add_u32 s56, s56, {1280 if i<7 else 1280*25}")
        if sk: g.lab(sk)
    e("s_waitcnt vmcnt(0)")
    for ti,t in enumerate(ts):
        sk=None
        if t==6: sk=g.newlab("Lsk7"); g_w3(sk)
        wperm32(8+ti*16, W3+16*t); wperm32(8+ti*16+8, W3+16*t+8)
        if sk: g.lab(sk)
poll_rdy_all(8)
e("s_cmp_lg_u32 s3, 3"); e("s_cbranch_scc1 L_WDONE")
srd(48,8,8*640*2)
e("v_lshrrev_b32 v6, 3, v0"); e("v_and_b32 v7, 7, v0"); e("v_lshlrev_b32 v7, 3, v7")
e("s_movk_i32 s57, 1280"); e("v_mul_lo_u32 v8, v6, s57"); e("v_add_u32 v8, v8, v7")
e(f"s_sub_u32 s57, s2, {E3B}"); e("s_lshl_b32 s56, s57, 6")
e("buffer_load_dwordx2 v[144:145], v8, s[48:51], s56 offen")
e("v_lshlrev_b32 v9, 8, v6"); e("v_lshl_add_u32 v9, v7, 1, v9")
e("s_lshr_b32 s56, s57, 1"); e("s_lshl_b32 s56, s56, 11"); e("s_and_b32 s57, s57, 1"); e("s_lshl_b32 s57, s57, 7"); e("s_add_u32 s56, s56, s57")
e(f"s_add_u32 s57, s56, {20*2048}"); e(f"s_add_u32 s56, s56, {50*2048}")
lp=g.newlab("Lpoll"); g.lab(lp)
e("buffer_load_dwordx4 v[136:139], v9, s[36:39], s57 offen sc1"); e("buffer_load_dwordx4 v[140:143], v9, s[36:39], s56 offen sc1")
e("s_waitcnt vmcnt(0)")
tag_check([137,141])
poll_tail(lp,100)
e("v_mov_b32 v146, v136"); e("v_mov_b32 v147, v138"); e("v_mov_b32 v148, v140"); e("v_mov_b32 v149, v142")
g.lab("L_WDONE")
stamp(4)
e("s_barrier")
stamp(5)
g.c("---- merge partials (wave 0)")
l=g.newlab("Lmd"); e("s_cmp_lg_u32 s3, 0"); e(f"s_cbranch_scc1 {l}")
M=8
e("v_lshlrev_b32 v6, 3, v0"); e("v_mov_b32 v7, 0")
for w in range(8): e(f"ds_read_b64 {vr(M+2*w,2)}, v6 offset:{LDS_PART+512*w}")
for k in range(4): e(f"ds_read_b128 {vr(24+4*k)}, v7 offset:{LDS_ML+16*k}")
e("s_waitcnt lgkmcnt(0)")
e("v_max3_f32 v6, v24, v26, v28"); e("v_max3_f32 v6, v6, v30, v32"); e("v_max3_f32 v6, v6, v34, v36"); e("v_max_f32 v6, v6, v38")
e(f"s_mov_b32 s57, 0x{f2u(C1):x}")
for w in range(8): m=24+2*w; e(f"v_sub_f32 v{m}, v{m}, v6")
for w in range(8): m=24+2*w; e(f"v_mul_f32 v{m}, s57, v{m}")
for w in range(8): m=24+2*w; e(f"v_exp_f32 v{m}, v{m}")
e("s_nop 0")
e("v_mul_f32 v7, v24, v25"); e("v_mul_f32 v156, v8, v24"); e("v_mul_f32 v157, v9, v24")
for w in range(1,8):
    m=24+2*w; e(f"v_fmac_f32 v7, v{m}, v{m+1}"); e(f"v_fmac_f32 v156, v{M+2*w}, v{m}"); e(f"v_fmac_f32 v157, v{M+2*w+1}, v{m}")
e("v_rcp_f32 v7, v7"); e("s_nop 0"); e("v_mul_f32 v156, v156, v7"); e("v_mul_f32 v157, v157, v7")
e("v_cvt_pk_bf16_f32 v156, v156, v157"); e("v_min_u32 v156, 0xfffeffff, v156")
e("s_lshl_b32 s56, s35, 3"); e("s_add_u32 s56, s56, s34"); e("s_lshl_b32 s56, s56, 8"); e(f"s_add_u32 s56, s56, {WS_O}")
e("v_lshlrev_b32 v6, 2, v0")
e("buffer_store_dword v156, v6, s[36:39], s56 offen sc1")
g.lab(l)
e(f"s_cmp_ge_u32 s2, {IDB}"); e("s_cbranch_scc1 L_END")
e(f"s_cmp_ge_u32 s2, {E3B}"); e("s_cbranch_scc1 L_E3")
e(f"s_cmp_ge_u32 s2, {E2B}"); e("s_cbranch_scc1 L_E2")
e(f"s_cmp_lt_u32 s2, {OWB}"); e("s_cbranch_scc1 L_END")
g.c("---- owner: gather o head 4k8+w (2 pairs)")
mk_vak(7); e("v_lshl_add_u32 v6, v3, 8, v7")
e("s_lshl_b32 s56, s66, 2"); e("s_add_u32 s56, s56, s3"); e("s_lshl_b32 s56, s56, 11"); e(f"s_add_u32 s56, s56, {WS_O}")
lp=g.newlab("Lpoll"); g.lab(lp)
for t in range(2): e(f"buffer_load_dwordx4 {vr(8+4*t)}, v6, s[36:39], s56 offen offset:{128*t} sc1")
e("s_waitcnt vmcnt(0)")
sentinel_check(list(range(8,16)))
poll_tail(lp,0)
stamp(6)
for t in range(2):
    for hb in range(2): mfma_kb(40+16*(2*t+hb), 8+4*t, 104, hb, t==0)
combine64(104, 136, lambda: e("s_lshl_b32 s56, s3, 12"), LDS_RED)
e("s_barrier")
e("s_cmp_ge_u32 s3, 2"); e("s_cbranch_scc1 L_END")
final_sum64(8, 20, 8, LDS_RED, "s3")
for k in range(4): e(f"v_min_u32 v{8+k}, 0xfffeffff, v{8+k}")
e("s_lshl_b32 s56, s69, 11"); e(f"s_add_u32 s56, s56, {WS_X1P}")
e("buffer_store_dwordx4 v[8:11], v6, s[36:39], s56 offen sc1")
e("s_branch L_END")
g.lab("L_E2")
e2_work()
g.lab("L_E3")
g.c("---- E3")
l=g.newlab("Lfin"); e("s_cmp_lg_u32 s3, 3"); e(f"s_cbranch_scc1 {l}")
e("v_lshrrev_b32 v6, 3, v0"); e("v_lshlrev_b32 v6, 8, v6"); e("v_and_b32 v7, 7, v0"); e("v_lshl_add_u32 v6, v7, 4, v6")
e(f"s_sub_u32 s57, s2, {E3B}"); e("s_lshr_b32 s56, s57, 1"); e("s_lshl_b32 s56, s56, 11"); e("s_and_b32 s57, s57, 1"); e("s_lshl_b32 s57, s57, 7"); e("s_add_u32 s56, s56, s57"); e(f"s_add_u32 s56, s56, {WS_X1P}")
for k8 in range(1,8): e(f"s_add_u32 s{61+k8}, s56, {k8*10*2048}")
lp=g.newlab("Lpoll"); g.lab(lp)
for k8 in range(8): e(f"buffer_load_dwordx4 {vr(8+4*k8)}, v6, s[36:39], {'s56' if k8==0 else 's%d'%(61+k8)} offen sc1")
e("s_waitcnt vmcnt(0)")
sentinel_check([8+4*k for k in range(8)])
poll_tail(lp,0)
for c in range(4):
    for k in range(4): e(f"v_add_f32 v{8+8*k+c}, v{8+8*k+c}, v{12+8*k+c}")
    e(f"v_add_f32 v{8+c}, v{8+c}, v{16+c}"); e(f"v_add_f32 v{24+c}, v{24+c}, v{32+c}"); e(f"v_add_f32 v{136+c}, v{8+c}, v{24+c}")
for d in range(2):
    a=136+2*d; b=137+2*d
    round_pair(a,b,24)
    unpack(146+d,25,26); e(f"v_mul_f32 v{a}, v{a}, v25"); e(f"v_mul_f32 v{b}, v{b}, v26"); round_pair(a,b,24)
    unpack(144+d,25,26); e(f"v_add_f32 v{a}, v{a}, v25"); e(f"v_add_f32 v{b}, v{b}, v26")
    e(f"v_cvt_pk_bf16_f32 v{28+d}, v{a}, v{b}"); unpack(28+d,a,b)
e("v_min_u32 v28, 0xfffeffff, v28"); e("v_min_u32 v29, 0xfffeffff, v29")
e("v_lshlrev_b32 v6, 3, v0"); e(f"s_sub_u32 s56, s2, {E3B}"); e("s_lshl_b32 s56, s56, 9"); e(f"s_add_u32 s56, s56, {WS_X1}")
e("buffer_store_dwordx2 v[28:29], v6, s[36:39], s56 offen sc1")
e("s_mov_b32 s61, 0x07060302")
stamp(7)
g.lab(l)
mk_vh(4)
e("s_lshl_b32 s56, s3, 10"); e(f"s_add_u32 s56, s56, {WS_H1}")
e(f"s_add_u32 s57, s3, 24"); e("s_min_u32 s57, s57, 26"); e("s_lshl_b32 s57, s57, 10"); e(f"s_add_u32 s57, s57, {WS_H1}")
e("s_add_u32 s62, s56, 4096"); e("s_add_u32 s63, s56, 8192"); e("s_add_u32 s64, s56, 12288"); e("s_add_u32 s65, s56, 16384"); e("s_add_u32 s66, s56, 20480")
lp=g.newlab("Lpoll"); g.lab(lp)
for t,sg in enumerate(["s56","s62","s63","s64","s65","s66","s57"]): e(f"buffer_load_dwordx4 {vr(8+4*t)}, v4, s[36:39], {sg} offen sc1")
e("s_waitcnt vmcnt(0)")
sentinel_check(list(range(8,36)))
poll_tail(lp,0)
stamp(6)
A3=152
for t in range(7):
    sk=None
    if t==6: sk=g.newlab("Lsk7"); g_w3(sk)
    for hb in range(2):
        for j in range(2):
            a=A3+(hb*2+j)*4
            e(f"v_mfma_f32_16x16x32_bf16 {vr(a)}, {vr(8+4*t)}, {vr(W3+16*t+8*hb+4*j)}, {'0' if t==0 else vr(a)}")
    if sk: g.lab(sk)
e("v_lshrrev_b32 v6, 1, v1"); e("v_lshlrev_b32 v6, 10, v6"); e("v_and_b32 v7, 1, v1"); e("v_lshl_add_u32 v6, v7, 9, v6"); e("v_lshl_add_u32 v6, v2, 3, v6")
e("s_lshl_b32 s56, s3, 11"); e("v_add_u32 v6, s56, v6")
e("s_mov_b32 s58, 0"); e("s_mov_b32 s59, -1"); e("s_nop 3")
for c in range(4):
    e(f"v_cndmask_b32 v{56+2*c}, v{A3+c}, v{A3+8+c}, s[58:59]"); e(f"v_cndmask_b32 v{57+2*c}, v{A3+4+c}, v{A3+12+c}, s[58:59]")
for c in range(4): e(f"ds_write_b64 v6, {vr(56+2*c,2)} offset:{LDS_RED+128*c}")
e("s_waitcnt lgkmcnt(0)")
e("s_barrier")
e("s_cmp_lg_u32 s3, 3"); e("s_cbranch_scc1 L_END")
e("v_lshlrev_b32 v6, 4, v0")
for k in range(8): e(f"ds_read_b128 {vr(8+4*k)}, v6 offset:{LDS_RED+1024*k}")
e("s_waitcnt lgkmcnt(0)")
for c in range(4):
    for k in range(4): e(f"v_add_f32 v{8+8*k+c}, v{8+8*k+c}, v{12+8*k+c}")
    e(f"v_add_f32 v{8+c}, v{8+c}, v{16+c}"); e(f"v_add_f32 v{24+c}, v{24+c}, v{32+c}"); e(f"v_add_f32 v{64+c}, v{8+c}, v{24+c}")
for d in range(2):
    a=136+2*d; b=137+2*d
    r0=64+2*d; r1=65+2*d
    round_pair(r0,r1,70)
    unpack(148+d,71,72); e(f"v_mul_f32 v{r0}, v{r0}, v71"); e(f"v_mul_f32 v{r1}, v{r1}, v72"); round_pair(r0,r1,70)
    e(f"v_add_f32 v{a}, v{a}, v{r0}"); e(f"v_add_f32 v{b}, v{b}, v{r1}")
    e(f"v_cvt_pk_bf16_f32 v{74+d}, v{a}, v{b}")
srd(48,28,8*640*2)
e("v_lshrrev_b32 v6, 3, v0"); e("s_movk_i32 s57, 1280"); e("v_mul_lo_u32 v6, v6, s57"); e("v_and_b32 v7, 7, v0"); e("v_lshl_add_u32 v6, v7, 3, v6")
e(f"s_sub_u32 s56, s2, {E3B}"); e("s_lshl_b32 s56, s56, 6")
e("buffer_store_dwordx2 v[74:75], v6, s[48:51], s56 offen")
e("s_branch L_END")
g.lab("L_STREAM")
g.c("================ streaming waves")
e("s_setprio 2")
e("s_sub_u32 s3, s3, 4")
e("v_lshlrev_b32 v4, 8, v2"); e("v_lshl_add_u32 v4, v1, 4, v4")
e("v_lshlrev_b32 v1, 10, v1"); e("v_lshl_add_u32 v1, v2, 4, v1")
e("v_mov_b32 v0, v4")
e("s_waitcnt lgkmcnt(0)")
e("s_lshl_b32 s56, s78, 20"); e("s_lshr_b32 s57, s78, 12")
NREC = "0" if "nostream" in OPT else "0x100000"
e("s_add_u32 s36, s10, s56"); e("s_addc_u32 s37, s11, s57"); e(f"s_mov_b32 s38, {NREC}"); e("s_mov_b32 s39, 0x20000")
e("s_add_u32 s40, s12, s56"); e("s_addc_u32 s41, s13, s57"); e(f"s_mov_b32 s42, {NREC}"); e("s_mov_b32 s43, 0x20000")
U=[40,72,104,136]
NTF="nt"
def kload(ub, so, win=0, bar=False):
    e(f"s_add_u32 s46, {so}, 4096")
    for j in range(8):
        if bar and j==2: e("s_barrier")
        if win: e(f"s_waitcnt vmcnt({win-1})")
        e(f"buffer_load_dwordx4 {vr(ub+4*j)}, v0, s[36:39], {so if j<4 else 's46'} offen offset:{64*(j&3)} {NTF}")
def vload(ub, so, win=0):
    e(f"s_add_u32 s46, {so}, 4096")
    for i in range(8):
        if win: e(f"s_waitcnt vmcnt({win-1})")
        e(f"buffer_load_dwordx4 {vr(ub+4*i)}, v1, s[40:43], {so if i<4 else 's46'} offen offset:{256*(i&3)} {NTF}")
e("s_lshl_b32 s44, s3, 13"); e("s_add_u32 s45, s44, 65536"); e("s_add_u32 s47, s44, 131072")
e(f"s_lshl_b32 s54, s3, 14"); e(f"s_add_u32 s54, s54, {LDS_PF}")
def kload_lds(so, win):
    e(f"s_add_u32 s46, {so}, 4096")
    for j in range(8):
        e(f"s_add_u32 m0, s54, {1024*j-64*(j&3)}")
        e(f"s_waitcnt vmcnt({win-1})" if win else "s_nop 0")
        e(f"buffer_load_dwordx4 v0, s[36:39], {so if j<4 else 's46'} offen offset:{64*(j&3)} {NTF} lds")
def vload_lds(so, win):
    e(f"s_add_u32 s46, {so}, 4096")
    for i in range(8):
        e(f"s_add_u32 m0, s54, {8192+1024*i-256*(i&3)}")
        e(f"s_waitcnt vmcnt({win-1})" if win else "s_nop 0")
        e(f"buffer_load_dwordx4 v1, s[40:43], {so if i<4 else 's46'} offen offset:{256*(i&3)} {NTF} lds")
kload(U[0],"s44",WIN,bar=True); vload(U[1],"s44",WIN); kload_lds("s47",WIN); vload_lds("s47",WIN); kload(U[2],"s45",WIN); vload(U[3],"s45",WIN)
for j in range(8):
    m=(0x0001000100010001<<j)
    e(f"s_mov_b32 s{62+2*j}, 0x{m&0xffffffff:x}"); e(f"s_mov_b32 s{63+2*j}, 0x{m>>32:x}")
e("s_mov_b32 s60, 0x05040100"); e("s_mov_b32 s61, 0x07060302")
e(f"s_mov_b32 s52, 0x{f2u(C1):x}"); e("s_mov_b32 s53, 0x3f803f80")
e("s_mov_b32 s48, 0xff800000"); e("s_mov_b32 s49, 0")
for k in range(4): e(f"v_mov_b32 v{4+k}, 0")
e("v_mov_b32 v2, 0")
stamp(1)
e("v_mov_b32 v16, 0")
lq=g.newlab("Lqr"); g.lab(lq)
e(f"ds_read_b32 v17, v16 offset:{LDS_QRDY}"); e("s_waitcnt lgkmcnt(0)"); e("v_readfirstlane_b32 s56, v17"); e("s_nop 1"); e("s_cmp_lg_u32 s56, 0")
ld=g.newlab("Lqd"); e(f"s_cbranch_scc1 {ld}"); e("s_sleep 2"); e(f"s_branch {lq}"); g.lab(ld)
stamp(3)
e("v_mbcnt_lo_u32_b32 v16, -1, 0"); e("v_mbcnt_hi_u32_b32 v16, -1, v16"); e("v_lshrrev_b32 v16, 4, v16"); e("v_lshlrev_b32 v16, 4, v16")
for j in range(4): e(f"ds_read_b128 {vr(24+4*j)}, v16 offset:{LDS_Q+64*j}")
def grab():
    e(f"v_mov_b32 v16, {LDS_CNT}"); e("v_mov_b32 v17, 1")
    e("s_mov_b64 exec, 1"); e("ds_add_rtn_u32 v3, v16, v17"); e("s_mov_b64 exec, -1")
e("s_setprio 0")
grab()
rare=[]
def lds_addr(d):
    e(f"v_mbcnt_lo_u32_b32 v{d}, -1, 0"); e(f"v_mbcnt_hi_u32_b32 v{d}, -1, v{d}"); e(f"v_lshlrev_b32 v{d}, 4, v{d}"); e(f"v_add_u32 v{d}, s54, v{d}")
def tile(KB,VB,idx,sl,kw="vmcnt(24) lgkmcnt(0)",vw="vmcnt(24)",mode="global",check=True):
    if check: e(f"s_cmp_ge_u32 {sl}, 0x100000"); e("s_cbranch_scc1 L_LOOPEND")
    e(f"s_waitcnt {kw}")
    for j in range(4):
        e(f"v_mfma_f32_16x16x32_bf16 v[8:11], {vr(KB+4*j)}, {vr(24+4*j)}, {'0' if j==0 else 'v[8:11]'}")
        e(f"v_mfma_f32_16x16x32_bf16 v[12:15], {vr(KB+16+4*j)}, {vr(24+4*j)}, {'0' if j==0 else 'v[12:15]'}")
        if j==0 and mode=="global": e(f"v_readfirstlane_b32 {sl}, v3")
    if mode=="global":
        e(f"s_lshl_b32 {sl}, {sl}, 13")
        kload(KB, sl)
        grab()
    else:
        lds_addr(16)
        e("s_waitcnt vmcnt(24)")
        for j in range(8): e(f"ds_read_b128 {vr(KB+4*j)}, v16 offset:{1024*j}")
    if "nocomp" in OPT and mode=="global":
        e("s_waitcnt vmcnt(24)"); vload(VB, sl); return
    e("v_max3_f32 v17, v8, v9, v10"); e("v_max3_f32 v17, v17, v11, v12"); e("v_max3_f32 v17, v17, v13, v14"); e("v_max_f32 v17, v17, v15")
    e("v_cmp_lt_f32 vcc, s48, v17")
    e(f"s_cbranch_vccnz L_RARE{idx}")
    g.lab(f"L_CONT{idx}")
    e("v_mov_b32 v16, s49")
    for k in range(8): e(f"v_fma_f32 v{8+k}, v{8+k}, s52, v16")
    for k in range(8): e(f"v_exp_f32 v{8+k}, v{8+k}")
    for u in range(4): e(f"v_cvt_pk_bf16_f32 v{8+u}, v{8+2*u}, v{9+2*u}")
    if vw: e(f"s_waitcnt {vw}")
    def T0(c):
        for u in range(4): e(f"v_perm_b32 v{16+u}, v{VB+8*u+4+c}, v{VB+8*u+c}, s60")
    def T1(c):
        for u in range(4): e(f"v_perm_b32 v{20+u}, v{VB+8*u+4+c}, v{VB+8*u+c}, s61")
    def Am(j):
        for u in range(4): e(f"v_cndmask_b32 v{12+u}, 0, v{8+u}, s[{62+2*j}:{63+2*j}]")
    T0(0)
    for u in range(4): e(f"v_dot2_f32_bf16 v2, v{8+u}, s53, v2")
    for c in range(4):
        Am(2*c); T1(c)
        if c==3 and mode=="global": vload(VB, sl)
        e("v_mfma_f32_16x16x32_bf16 v[4:7], v[12:15], v[16:19], v[4:7]")
        Am(2*c+1)
        if c<3: T0(c+1)
        else: e("s_nop 1")
        e("v_mfma_f32_16x16x32_bf16 v[4:7], v[12:15], v[20:23], v[4:7]")
    if mode=="lds":
        lds_addr(16)
        e("s_waitcnt vmcnt(16)")
        for i in range(8): e(f"ds_read_b128 {vr(VB+4*i)}, v16 offset:{8192+1024*i}")
    rare.append(idx)
tile(U[0],U[1],"a","s44",kw="vmcnt(40) lgkmcnt(0)",vw="vmcnt(24)",mode="lds",check=False)
tile(U[2],U[3],"b","s45",kw="vmcnt(8) lgkmcnt(0)",vw="vmcnt(8)",check=False)
tile(U[0],U[1],"c","s44",kw="lgkmcnt(0)",vw=None,check=False)
g.lab("L_LOOP")
tile(U[2],U[3],1,"s45"); tile(U[0],U[1],0,"s44")
e("s_branch L_LOOP")
g.lab("L_LOOPEND")
e("s_waitcnt lgkmcnt(0)")
stamp(4)
e("s_nop 7"); e("s_nop 3")
e("v_mbcnt_lo_u32_b32 v3, -1, 0"); e("v_mbcnt_hi_u32_b32 v3, -1, v3")
e("v_mov_b32 v17, v2"); e("s_nop 1"); e("v_permlane16_swap_b32 v2, v17"); e("s_nop 1"); e("v_add_f32 v2, v2, v17")
e("v_mov_b32 v17, v2"); e("s_nop 1"); e("v_permlane32_swap_b32 v2, v17"); e("s_nop 1"); e("v_add_f32 v19, v2, v17")
e("v_mov_b32 v18, s48")
e("v_and_b32 v16, 15, v3"); e("v_lshlrev_b32 v16, 5, v16"); e("v_lshrrev_b32 v17, 4, v3"); e("v_lshl_add_u32 v16, v17, 4, v16")
e("s_lshl_b32 s56, s3, 9"); e("v_add_u32 v16, s56, v16")
e("s_lshl_b32 s56, s3, 3"); e("v_mov_b32 v17, s56")
e("s_mov_b32 exec_hi, 0")
e(f"ds_write_b128 v16, v[4:7] offset:{LDS_PART}")
e(f"ds_write_b64 v17, v[18:19] offset:{LDS_ML}")
e("s_mov_b32 exec_hi, -1")
e("s_waitcnt lgkmcnt(0)")
e("s_barrier")
e(f"s_sub_u32 s56, s2, {E2B}"); e("s_cmp_ge_u32 s56, 27"); e("s_cbranch_scc1 L_END")
e("s_waitcnt vmcnt(0)")
e("v_mov_b32 v0, v3"); e("v_lshrrev_b32 v1, 4, v0"); e("v_and_b32 v2, 15, v0"); e("v_and_b32 v3, 7, v2")
e("s_add_u32 s68, s3, 4"); e("s_mov_b32 s30, 0")
srd(36,6,WS_SIZE)
e("v_mov_b32 v6, 0"); e(f"ds_read_b32 v7, v6 offset:{LDS_NONCE}"); e("s_waitcnt lgkmcnt(0)"); e("v_readfirstlane_b32 s31, v7")
e("s_mov_b32 s60, 0x05040100"); e("s_mov_b32 s61, 0x07060302")
l=g.newlab("Lnp"); e("s_cmp_ge_u32 s68, 10"); e(f"s_cbranch_scc1 {l}")
e2_preload()
g.lab(l)
e2_work()
for idx in rare:
    g.lab(f"L_RARE{idx}")
    e("v_mov_b32 v18, v17"); e("s_nop 1"); e("v_permlane16_swap_b32 v17, v18"); e("s_nop 1"); e("v_max_f32 v17, v17, v18")
    e("v_mov_b32 v18, v17"); e("s_nop 1"); e("v_permlane32_swap_b32 v17, v18"); e("s_nop 1"); e("v_max_f32 v17, v17, v18")
    e("v_max_f32 v17, s48, v17")
    e("v_sub_f32 v18, s48, v17"); e("v_mul_f32 v18, s52, v18"); e("v_exp_f32 v18, v18")
    e("v_mul_f32 v19, s52, v17"); e("v_sub_f32 v19, 0, v19")
    e("v_readfirstlane_b32 s48, v17"); e("v_readfirstlane_b32 s49, v19")
    for k in range(4): e(f"v_mul_f32 v{4+k}, v{4+k}, v18")
    e("v_mul_f32 v2, v2, v18")
    e("s_nop 1")
    e(f"s_branch L_CONT{idx}")
g.lab("L_END")
if DEBUG_STAMPS:
    e("s_mov_b64 exec, -1")
    stamp(11)
    e("s_memtime s[92:93]"); e("s_waitcnt lgkmcnt(0)"); e("s_mov_b32 s90, s92")
    if "spin" in OPT: e("s_mov_b32 s90, s30")
    srd(36,6,WS_SIZE)
    e("s_lshl_b32 s94, s2, 10"); e("s_lshl_b32 s95, s79, 6"); e("s_add_u32 s94, s94, s95"); e(f"s_add_u32 s94, s94, {WS_STAMP}")
    e("v_mov_b32 v1, 0")
    for k in range(12): e(f"v_mov_b32 v0, s{30 if (k==8 and 'spin2' in OPT) else 80+k}"); e(f"buffer_store_dword v0, v1, s[36:39], s94 offen offset:{4*k}")
g.lab("L_EXIT")
e("s_endpgm")
g.L.append('.section .rodata,"a"'); g.L.append(".p2align 6"); g.L.append(f".amdhsa_kernel {KNAME}")
for x in ["  .amdhsa_next_free_vgpr 168","  .amdhsa_next_free_sgpr 96","  .amdhsa_accum_offset 168","  .amdhsa_group_segment_fixed_size 0","  .amdhsa_kernarg_size 104","  .amdhsa_user_sgpr_count 2","  .amdhsa_user_sgpr_kernarg_segment_ptr 1","  .amdhsa_system_sgpr_workgroup_id_x 1",".end_amdhsa_kernel"]: g.L.append(x)
open(sys.argv[1],"w").write("\n".join(g.L)+"\n")
```

```python
import sys, struct
KNAME = "adaLN_cond__mha_block_cached__dense_activation_silu__decode_kernel"
OPT = dict((a.split('=')+['1'])[:2] for a in sys.argv[2:])
DEBUG_STAMPS = "stamp" in OPT
WIN = int(OPT.get("win","12"))
WNT = "nt"
P1B=0; P2B=40; OWB=104; E2B=184; E3B=211; IDB=231
WS_MOD=0x0
WS_Q=0x20000
WS_O=0x40000
WS_X1P=0x50000
WS_H1=0x78000
WS_RDY=0x7F000
WS_X1=0x80000
WS_SIZE=0x100000
WS_STAMP=0x90000
LDS_RED=0
LDS_Q=16384
LDS_FLG=16640
LDS_CNT=16656
LDS_NONCE=16660
LDS_QRDY=16664
LDS_PART=16704
LDS_ML=LDS_PART+4096
LDS_ST2=LDS_ML+64
LDS_PF=24576
LDS_ACC=LDS_PF
LDS_SIZE=LDS_PF+131072
C1 = 0.08838834764831845*1.4426950408889634
def f2u(f): return struct.unpack('<I',struct.pack('<f',f))[0]
class G:
    def __init__(s): s.L=[]; s.n=0
    def e(s,x): s.L.append("  "+x)
    def lab(s,x): s.L.append(x+":")
    def newlab(s,p="L"): s.n+=1; return f"{p}_{s.n}"
    def c(s,x): s.L.append("  ; "+x)
g=G(); e=g.e
def stamp(idx):
    if not DEBUG_STAMPS: return
    e("s_memrealtime s[92:93]"); e("s_waitcnt lgkmcnt(0)"); e(f"s_mov_b32 s{80+idx}, s92")
def poll_tail(lp,sl):
    ld=g.newlab("Lpd"); e(f"s_cbranch_vccz {ld}")
    if "pp" in OPT: e("s_setprio 0")
    if sl: e(f"s_sleep {sl}")
    e("s_add_u32 s30, s30, 1"); e("s_cmp_gt_u32 s30, 400000"); e(f"s_cbranch_scc0 {lp}"); g.lab(ld)
    if "pp" in OPT: e("s_setprio 3")
def vr(b,n=4): return f"v[{b}:{b+n-1}]"
def srd(base, ptr, size):
    e(f"s_mov_b32 s{base}, s{ptr}"); e(f"s_mov_b32 s{base+1}, s{ptr+1}"); e(f"s_mov_b32 s{base+2}, {size}"); e(f"s_mov_b32 s{base+3}, 0x20000")
hdr = open('adaLN_cond__mha_block_cached__dense_activation_silu__decode.s.ref').read().split('\n')
for ln in hdr:
    if ln.startswith('; @launch'): break
    g.L.append(ln)
g.L.append(f"; @launch grid=(256,1,1) block=(768,1,1) lds={LDS_SIZE}")
g.L.append('.amdgcn_target "amdgcn-amd-amdhsa--gfx950"')
g.L.append(".text"); g.L.append(f".globl {KNAME}"); g.L.append(".p2align 8"); g.L.append(f".type {KNAME},@function"); g.lab(KNAME)
e("s_cmp_ge_u32 s2, 256"); e("s_cbranch_scc1 L_EXIT")
e("s_load_dwordx16 s[8:23], s[0:1], 0")
e("s_load_dwordx4 s[24:27], s[0:1], 64")
e("s_load_dwordx2 s[28:29], s[0:1], 80")
e("s_load_dwordx4 s[4:7], s[0:1], 88")
e("v_lshrrev_b32 v1, 6, v0")
e("v_and_b32 v0, 63, v0")
e("v_readfirstlane_b32 s3, v1")
e("s_lshr_b32 s34, s2, 5")
e("s_and_b32 s35, s2, 31")
e("s_mov_b32 s78, s2")
ROT=int(OPT.get("rot","0"))
if ROT: e(f"s_add_u32 s2, s2, {ROT}"); e("s_and_b32 s2, s2, 255")
e("v_lshrrev_b32 v1, 4, v0")
e("v_and_b32 v2, 15, v0")
e("s_mov_b32 s79, s3")
if DEBUG_STAMPS:
    for k in range(12): e(f"s_mov_b32 s{80+k}, 0")
    e("s_waitcnt lgkmcnt(0)")
    stamp(0)
    e("s_memtime s[92:93]"); e("s_waitcnt lgkmcnt(0)"); e("s_mov_b32 s89, s92")
e("s_cmp_ge_u32 s3, 4")
e("s_cbranch_scc1 L_STREAM")

e(f"s_setprio {OPT.get('prio','3')}")
e("v_and_b32 v3, 7, v2"); e("v_mov_b32 v4, 0"); e("v_mov_b32 v5, 0")
e("s_mov_b32 s60, 0x05040100"); e("s_mov_b32 s61, 0x07060302"); e("s_mov_b32 s30, 0"); e("s_mov_b32 s31, 0")
l=g.newlab("Lq0"); e("s_cmp_lg_u32 s3, 1"); e(f"s_cbranch_scc1 {l}")
e("v_mov_b32 v6, 0"); e(f"ds_write_b32 v6, v6 offset:{LDS_QRDY}"); e("s_waitcnt lgkmcnt(0)")
g.lab(l)
e("s_waitcnt lgkmcnt(0)")
e("s_barrier")
srd(36,6,WS_SIZE); srd(40,4,256)

def mk_vak(d):
    e(f"v_lshrrev_b32 v{d}, 3, v2"); e(f"v_lshlrev_b32 v{d}, 6, v{d}"); e(f"v_lshl_add_u32 v{d}, v1, 4, v{d}")
def mk_vt(d):
    e(f"v_lshrrev_b32 v{d}, 3, v2"); e(f"v_lshlrev_b32 v{d}, 7, v{d}"); e(f"v_lshl_add_u32 v{d}, v3, 8, v{d}"); e(f"v_lshl_add_u32 v{d}, v1, 5, v{d}")
def mk_vh(d):
    e(f"v_lshrrev_b32 v{d}, 3, v2"); e(f"v_lshlrev_b32 v{d}, 6, v{d}"); e(f"v_lshl_add_u32 v{d}, v3, 7, v{d}"); e(f"v_lshl_add_u32 v{d}, v1, 4, v{d}")
def mk_vx1(d):
    e(f"v_lshrrev_b32 v{d}, 3, v2"); e(f"v_lshlrev_b32 v{d}, 9, v{d}"); e(f"v_lshl_add_u32 v{d}, v3, 6, v{d}"); e(f"v_lshl_add_u32 v{d}, v1, 4, v{d}")
def g_w2(skip): e("s_cmp_ge_u32 s3, 2"); e(f"s_cbranch_scc1 {skip}")
def g_w3(skip): e("s_cmp_eq_u32 s3, 3"); e(f"s_cbranch_scc1 {skip}")
def guard3(fn):
    skip=g.newlab("Lsk3"); g_w2(skip); fn(); g.lab(skip)
def wlane(rowstride):
    e(f"s_mov_b32 s57, {8*rowstride}"); e("v_mul_lo_u32 v5, v1, s57"); e("v_lshl_add_u32 v5, v2, 3, v5")
def wload64(npairs, rowstride, ldbase, pair_code, guards={}):
    for t in range(npairs):
        skip=None
        if t in guards: skip=g.newlab("Lskw"); guards[t](skip)
        pair_code(t)
        for hb in range(2):
            for i in range(8):
                e(f"buffer_load_dwordx2 {vr(ldbase+(2*t+hb)*16+2*i,2)}, v5, s[44:47], s56 offen {WNT}")
                if not (hb==1 and i==7): e(f"s_add_u32 s56, s56, {rowstride if i<7 else rowstride*25}")
        if skip: g.lab(skip)
def wperm64(ld, fr):
    for u in range(4):
        e(f"v_perm_b32 v{fr+u}, v{ld+4*u+2}, v{ld+4*u}, s60")
        e(f"v_perm_b32 v{fr+4+u}, v{ld+4*u+2}, v{ld+4*u}, s61")
        e(f"v_perm_b32 v{fr+8+u}, v{ld+4*u+3}, v{ld+4*u+1}, s60")
        e(f"v_perm_b32 v{fr+12+u}, v{ld+4*u+3}, v{ld+4*u+1}, s61")
def mfma_kb(fr, af, acc, hb, first):
    for j in range(4):
        a=acc+(hb*4+j)*4
        e(f"v_mfma_f32_16x16x32_bf16 {vr(a)}, {vr(af)}, {vr(fr+4*j)}, {'0' if first else vr(a)}")
def combine64(acc, T, slot_sreg_code, base):
    e("v_lshrrev_b32 v6, 1, v1"); e("v_lshlrev_b32 v6, 11, v6"); e("v_and_b32 v7, 1, v1"); e("v_lshl_add_u32 v6, v7, 10, v6"); e("v_lshl_add_u32 v6, v2, 4, v6")
    slot_sreg_code(); e("v_add_u32 v6, s56, v6")
    e("s_mov_b32 s58, 0"); e("s_mov_b32 s59, -1"); e("s_nop 2")
    for c in range(4):
        for j in range(4): e(f"v_cndmask_b32 v{T+4*c+j}, v{acc+4*j+c}, v{acc+16+4*j+c}, s[58:59]")
    for c in range(4): e(f"ds_write_b128 v6, {vr(T+4*c)} offset:{base+256*c}")
    e("s_waitcnt lgkmcnt(0)")
def final_sum64(dst, T, nslots, base, half_sreg):
    e("v_lshrrev_b32 v6, 3, v0"); e("v_lshlrev_b32 v6, 8, v6"); e("v_and_b32 v7, 7, v0"); e("v_lshl_add_u32 v6, v7, 4, v6"); e(f"s_lshl_b32 s56, {half_sreg}, 7"); e("v_add_u32 v6, s56, v6")
    for k in range(nslots): e(f"ds_read_b128 {vr(T+4*k)}, v6 offset:{base+2048*k}")
    e("s_waitcnt lgkmcnt(0)")
    regs=[T+4*k for k in range(nslots)]
    while len(regs)>1:
        nr=[]
        for i in range(0,len(regs)-1,2):
            d = dst if len(regs)==2 else regs[i]
            for c in range(4): e(f"v_add_f32 v{d+c}, v{regs[i]+c}, v{regs[i+1]+c}")
            nr.append(d)
        if len(regs)%2: nr.append(regs[-1])
        regs=nr
def lds_sync_arrive():
    e("v_mov_b32 v6, s31"); e("s_lshl_b32 s56, s3, 2"); e("v_mov_b32 v7, s56")
    e(f"ds_write_b32 v7, v6 offset:{LDS_FLG}")
def lds_sync_wait(tv):
    e("v_mov_b32 v7, 0")
    lp=g.newlab("Lpoll"); g.lab(lp)
    e(f"ds_read_b128 {vr(tv)}, v7 offset:{LDS_FLG}")
    e("s_waitcnt lgkmcnt(0)")
    tag_check([tv,tv+1,tv+2,tv+3])
    poll_tail(lp,0)
def silu_pair(lo,hi,t0,t1):
    nl=0xbfb8aa3b
    e(f"v_mul_f32 v{t0}, 0x{nl:x}, v{lo}"); e(f"v_mul_f32 v{t1}, 0x{nl:x}, v{hi}")
    e(f"v_exp_f32 v{t0}, v{t0}"); e(f"v_exp_f32 v{t1}, v{t1}")
    e("s_nop 0")
    e(f"v_add_f32 v{t0}, 1.0, v{t0}"); e(f"v_add_f32 v{t1}, 1.0, v{t1}")
    e(f"v_rcp_f32 v{t0}, v{t0}"); e(f"v_rcp_f32 v{t1}, v{t1}")
    e("s_nop 0")
    e(f"v_mul_f32 v{lo}, v{lo}, v{t0}"); e(f"v_mul_f32 v{hi}, v{hi}, v{t1}")
def unpack(src,lo,hi):
    e(f"v_lshlrev_b32 v{lo}, 16, v{src}"); e(f"v_and_b32 v{hi}, 0xffff0000, v{src}")
def round_pair(a,b,t):
    e(f"v_cvt_pk_bf16_f32 v{t}, v{a}, v{b}"); unpack(t,a,b)
def xor_reduce_add_345(v,t):
    e("s_nop 1")
    e(f"v_add_f32_dpp v{v}, v{v}, v{v} row_ror:8 row_mask:0xf bank_mask:0xf")
    e(f"v_mov_b32 v{t}, v{v}"); e("s_nop 1"); e(f"v_permlane16_swap_b32 v{v}, v{t}"); e("s_nop 1"); e(f"v_add_f32 v{v}, v{v}, v{t}")
    e(f"v_mov_b32 v{t}, v{v}"); e("s_nop 1"); e(f"v_permlane32_swap_b32 v{v}, v{t}"); e("s_nop 1"); e(f"v_add_f32 v{v}, v{v}, v{t}")
def stats_finish(vs, vq, vmean, vrs, t):
    inv=f2u(1.0/640)
    e(f"v_mul_f32 v{vs}, 0x{inv:x}, v{vs}"); e(f"v_mul_f32 v{vq}, 0x{inv:x}, v{vq}")
    e(f"v_fma_f32 v{vq}, -v{vs}, v{vs}, v{vq}")
    e(f"v_max_f32 v{vq}, 0, v{vq}")
    e(f"v_cvt_pk_bf16_f32 v{t}, v{vs}, v{vq}")
    unpack(t, vmean, vq)
    e(f"v_add_f32 v{vq}, 0x{f2u(1e-5):x}, v{vq}")
    e(f"v_cvt_pk_bf16_f32 v{t}, v{vq}, v{vq}"); e(f"v_lshlrev_b32 v{vq}, 16, v{t}")
    e(f"v_sqrt_f32 v{vq}, v{vq}"); e("s_nop 0")
    e(f"v_cvt_pk_bf16_f32 v{t}, v{vq}, v{vq}"); e(f"v_lshlrev_b32 v{vq}, 16, v{t}")
    e(f"v_rcp_f32 v{vrs}, v{vq}"); e("s_nop 0")
def sentinel_check(regs):
    e(f"v_cmp_eq_u32 vcc, -1, v{regs[0]}")
    for k in regs[1:]: e(f"v_cmp_eq_u32 s[58:59], -1, v{k}"); e("s_or_b64 vcc, vcc, s[58:59]")
def tag_check(regs):
    e(f"v_cmp_ne_u32 vcc, s31, v{regs[0]}")
    for k in regs[1:]: e(f"v_cmp_ne_u32 s[58:59], s31, v{k}"); e("s_or_b64 vcc, vcc, s[58:59]")
def get_nonce(tv):
    e(f"v_mov_b32 v{tv+1}, 0")
    lp=g.newlab("Lpoll"); g.lab(lp)
    e(f"buffer_load_dword v{tv}, v{tv+1}, s[40:43], 0 offen sc1")
    e("s_waitcnt vmcnt(0)")
    e(f"v_cmp_eq_u32 vcc, 0, v{tv}")
    poll_tail(lp,1)
    e(f"v_readfirstlane_b32 s31, v{tv}")
    e("s_nop 1")
def poll_rdy_all(tv):
    sk=g.newlab("Lnordy"); e("s_cmp_lg_u32 s3, 0"); e(f"s_cbranch_scc1 {sk}")
    e(f"v_lshlrev_b32 v{tv+4}, 4, v0"); e(f"s_mov_b32 s56, {WS_RDY}")
    lp=g.newlab("Lpoll"); g.lab(lp)
    e(f"buffer_load_dwordx4 {vr(tv)}, v{tv+4}, s[36:39], s56 offen sc1")
    e("s_waitcnt vmcnt(0)")
    tag_check([tv,tv+1,tv+2,tv+3])
    poll_tail(lp,100)
    g.lab(sk)
def tagged_store_half(slot_code):
    e("v_cvt_pk_bf16_f32 v12, v8, v9"); e("v_cvt_pk_bf16_f32 v14, v10, v11"); e("v_mov_b32 v13, s31"); e("v_mov_b32 v15, s31")
    slot_code()
    e("buffer_store_dwordx4 v[12:15], v6, s[36:39], s56 offen sc1")
def p_finish(slot_code):
    lds_sync_arrive()
    stamp(1)
    l=g.newlab("Lpd_"); e("s_cmp_ge_u32 s3, 2"); e(f"s_cbranch_scc1 {l}")
    lds_sync_wait(20)
    final_sum64(8, 20, 8, LDS_RED, "s3")
    tagged_store_half(slot_code)
    stamp(2)
    g.lab(l)
def pair_w4t(rowstride):
    def f(t): e(f"s_add_u32 s56, s3, {4*t}"); e(f"s_mul_i32 s56, s56, {64*rowstride}")
    return f
AF=8; ACC=20; WR=52; FT=148; TT=164

l0=g.newlab("Lr"); e("s_cmp_lg_u32 s2, 255"); e(f"s_cbranch_scc1 {l0}"); e("s_cmp_lg_u32 s3, 3"); e(f"s_cbranch_scc1 {l0}")
e("s_memrealtime s[58:59]"); e("s_waitcnt lgkmcnt(0)"); e("s_or_b32 s58, s58, 1"); e("v_mov_b32 v8, s58"); e("v_mov_b32 v9, 0")
e("buffer_store_dword v8, v9, s[40:43], 0 offen sc1")
g.lab(l0)
e(f"s_cmp_ge_u32 s2, {IDB}"); e("s_cbranch_scc1 L_P1C_A")
e(f"s_cmp_ge_u32 s2, {OWB+15}"); e("s_cbranch_scc1 L_PNONE")
e(f"s_cmp_ge_u32 s2, {OWB}"); e("s_cbranch_scc1 L_P1C_B")
e(f"s_cmp_ge_u32 s2, {P2B}"); e("s_cbranch_scc1 L_P2")
g.c("---- P1")
e("s_add_u32 s69, s2, 20")
srd(48,24,8*640*2)
e("s_lshl_b32 s56, s69, 7"); e("s_add_u32 s44, s26, s56"); e("s_addc_u32 s45, s27, 0"); e("s_sub_u32 s46, %d, s56"%(640*7680)); e("s_mov_b32 s47, 0x20000")
mk_vak(7); e("s_movk_i32 s57, 1280"); e("v_mul_lo_u32 v6, v3, s57"); e("v_add_u32 v6, v6, v7")
e("s_lshl_b32 s56, s3, 7")
for t in range(3): e(f"buffer_load_dwordx4 {vr(AF+4*t)}, v6, s[48:51], s56 offen offset:{512*t}")
wlane(7680)
wload64(3,7680,WR,pair_w4t(7680),{2:g_w2})
e("v_mov_b32 v7, 0"); e("buffer_load_dword v4, v7, s[40:43], 0 offen sc1")
l1=g.newlab("Lw"); l2=g.newlab("Lw")
e("s_cmp_ge_u32 s3, 2"); e(f"s_cbranch_scc1 {l1}"); e("s_waitcnt vmcnt(49)"); e(f"s_branch {l2}"); g.lab(l1); e("s_waitcnt vmcnt(33)"); g.lab(l2)
def p1_silu(t):
    for d in range(4):
        r_=AF+4*t+d
        unpack(r_,TT,TT+1); silu_pair(TT,TT+1,TT+2,TT+3); e(f"v_cvt_pk_bf16_f32 v{r_}, v{TT}, v{TT+1}")
p1_silu(0); p1_silu(1); guard3(lambda: p1_silu(2))
e("s_waitcnt vmcnt(0)")
def gemv64_raw(t):
    for hb in range(2):
        wperm64(WR+(2*t+hb)*16, FT); e("s_nop 1"); mfma_kb(FT, AF+4*t, ACC, hb, t==0)
gemv64_raw(0); gemv64_raw(1); guard3(lambda: gemv64_raw(2))
e("v_readfirstlane_b32 s31, v4")
combine64(ACC, WR, lambda: e("s_lshl_b32 s56, s3, 12"), LDS_RED)
e("s_cmp_lg_u32 s31, 0")
l=g.newlab("Lgn"); e(f"s_cbranch_scc1 {l}"); get_nonce(TT); g.lab(l)
p_finish(lambda: e("s_lshl_b32 s56, s69, 11"))
e("s_branch L_QWAIT")
g.lab("L_P1C_A"); e(f"s_sub_u32 s69, s2, {IDB}"); e("s_branch L_P1C")
g.lab("L_P1C_B"); e(f"s_sub_u32 s69, s2, {OWB-25}")
g.lab("L_P1C")
srd(48,24,8*640*2)
e("s_lshl_b32 s56, s69, 6"); e("s_add_u32 s44, s26, s56"); e("s_addc_u32 s45, s27, 0"); e("s_sub_u32 s46, %d, s56"%(640*7680)); e("s_mov_b32 s47, 0x20000")
mk_vak(7); e("s_movk_i32 s57, 1280"); e("v_mul_lo_u32 v6, v3, s57"); e("v_add_u32 v6, v6, v7")
e("s_lshl_b32 s56, s3, 7")
for t in range(3): e(f"buffer_load_dwordx4 {vr(AF+4*t)}, v6, s[48:51], s56 offen offset:{512*t}")
e("s_mov_b32 s57, %d"%(8*7680)); e("v_mul_lo_u32 v5, v1, s57"); e("v_lshl_add_u32 v5, v2, 2, v5")
for t in range(3):
    skip=None
    if t==2: skip=g.newlab("Lskw"); g_w2(skip)
    pair_w4t(7680)(t)
    for hb in range(2):
        for i in range(8):
            e(f"buffer_load_dword v{WR+(2*t+hb)*8+(i>>1)+4*(i&1)}, v5, s[44:47], s56 offen {WNT}")
            if not (hb==1 and i==7): e(f"s_add_u32 s56, s56, {7680 if i<7 else 7680*25}")
    if skip: g.lab(skip)
e("v_mov_b32 v7, 0"); e("buffer_load_dword v4, v7, s[40:43], 0 offen sc1")
l1=g.newlab("Lw"); l2=g.newlab("Lw")
e("s_cmp_ge_u32 s3, 2"); e(f"s_cbranch_scc1 {l1}"); e("s_waitcnt vmcnt(49)"); e(f"s_branch {l2}"); g.lab(l1); e("s_waitcnt vmcnt(33)"); g.lab(l2)
p1_silu(0); p1_silu(1); guard3(lambda: p1_silu(2))
e("s_waitcnt vmcnt(0)")
def gemv32_raw(t):
    for hb in range(2):
        ld=WR+(2*t+hb)*8
        for u in range(4):
            e(f"v_perm_b32 v{FT+u}, v{ld+4+u}, v{ld+u}, s60"); e(f"v_perm_b32 v{FT+4+u}, v{ld+4+u}, v{ld+u}, s61")
        e("s_nop 1")
        for j in range(2):
            a=ACC+(hb*2+j)*4
            e(f"v_mfma_f32_16x16x32_bf16 {vr(a)}, {vr(AF+4*t)}, {vr(FT+4*j)}, {'0' if t==0 else vr(a)}")
gemv32_raw(0); gemv32_raw(1); guard3(lambda: gemv32_raw(2))
e("v_readfirstlane_b32 s31, v4")
e("v_lshrrev_b32 v6, 1, v1"); e("v_lshlrev_b32 v6, 10, v6"); e("v_and_b32 v7, 1, v1"); e("v_lshl_add_u32 v6, v7, 9, v6"); e("v_lshl_add_u32 v6, v2, 3, v6")
e("s_lshl_b32 s56, s3, 11"); e("v_add_u32 v6, s56, v6")
e("s_mov_b32 s58, 0"); e("s_mov_b32 s59, -1"); e("s_nop 3")
for c in range(4):
    e(f"v_cndmask_b32 v{WR+2*c}, v{ACC+c}, v{ACC+8+c}, s[58:59]"); e(f"v_cndmask_b32 v{WR+2*c+1}, v{ACC+4+c}, v{ACC+12+c}, s[58:59]")
for c in range(4): e(f"ds_write_b64 v6, {vr(WR+2*c,2)} offset:{LDS_RED+128*c}")
e("s_waitcnt lgkmcnt(0)")
e("s_cmp_lg_u32 s31, 0")
l=g.newlab("Lgn"); e(f"s_cbranch_scc1 {l}"); get_nonce(TT); g.lab(l)
lds_sync_arrive()
stamp(1)
l=g.newlab("Lp1c"); e("s_cmp_lg_u32 s3, 0"); e(f"s_cbranch_scc1 {l}")
lds_sync_wait(20)
e("v_lshlrev_b32 v6, 4, v0")
for k in range(8): e(f"ds_read_b128 {vr(20+4*k)}, v6 offset:{LDS_RED+1024*k}")
e("s_waitcnt lgkmcnt(0)")
for c in range(4):
    for k in range(4): e(f"v_add_f32 v{20+8*k+c}, v{20+8*k+c}, v{24+8*k+c}")
    e(f"v_add_f32 v{20+c}, v{20+c}, v{28+c}"); e(f"v_add_f32 v{36+c}, v{36+c}, v{44+c}"); e(f"v_add_f32 v{8+c}, v{20+c}, v{36+c}")
e("v_lshrrev_b32 v6, 3, v0"); e("v_lshlrev_b32 v6, 8, v6"); e("v_and_b32 v7, 7, v0"); e("v_lshl_add_u32 v6, v7, 4, v6")
tagged_store_half(lambda: (e("s_lshr_b32 s56, s69, 1"), e("s_lshl_b32 s56, s56, 11"), e("s_and_b32 s57, s69, 1"), e("s_lshl_b32 s57, s57, 7"), e("s_add_u32 s56, s56, s57")))
stamp(2)
g.lab(l)
e("s_branch L_QWAIT")
g.lab("L_PNONE")
get_nonce(TT)
e("s_branch L_QWAIT")
g.lab("L_P2")
g.c("---- P2")
srd(48,8,8*640*2)
e(f"s_sub_u32 s69, s2, {P2B}"); e("s_lshl_b32 s56, s69, 7"); e("s_add_u32 s44, s14, s56"); e("s_addc_u32 s45, s15, 0"); e("s_sub_u32 s46, %d, s56"%(640*8192)); e("s_mov_b32 s47, 0x20000")
e("s_movk_i32 s57, 1280"); e("v_mul_lo_u32 v6, v3, s57")
e("v_lshrrev_b32 v7, 3, v0"); e("v_mul_lo_u32 v7, v7, s57"); e("v_and_b32 v5, 7, v0"); e("v_lshl_add_u32 v7, v5, 4, v7")
XS=20
WR2=68
for k in range(10): e(f"buffer_load_dwordx4 {vr(XS+4*k)}, v7, s[48:51], 0 offen offset:{128*k}")
mk_vak(5); e("v_add_u32 v6, v6, v5")
e("s_lshl_b32 s56, s3, 7")
for t in range(3): e(f"buffer_load_dwordx4 {vr(AF+4*t)}, v6, s[48:51], s56 offen offset:{512*t}")
P2S=int(OPT.get("p2s","8192"))
wlane(P2S)
wload64(3,P2S,WR2,pair_w4t(P2S),{2:g_w2})
l1=g.newlab("Lw"); l2=g.newlab("Lw")
e("s_cmp_ge_u32 s3, 2"); e(f"s_cbranch_scc1 {l1}"); e("s_waitcnt vmcnt(48)"); e(f"s_branch {l2}"); g.lab(l1); e("s_waitcnt vmcnt(32)"); g.lab(l2)
e(f"v_mov_b32 v{TT+2}, 0"); e(f"v_mov_b32 v{TT+3}, 0")
for k in range(40):
    unpack(XS+k,TT,TT+1)
    e(f"v_add_f32 v{TT+2}, v{TT+2}, v{TT}"); e(f"v_fmac_f32 v{TT+3}, v{TT}, v{TT}")
    e(f"v_add_f32 v{TT+2}, v{TT+2}, v{TT+1}"); e(f"v_fmac_f32 v{TT+3}, v{TT+1}, v{TT+1}")
for vv in (TT+2,TT+3):
    e("s_nop 1"); e(f"v_add_f32_dpp v{vv}, v{vv}, v{vv} quad_perm:[1,0,3,2] row_mask:0xf bank_mask:0xf")
    e("s_nop 1"); e(f"v_add_f32_dpp v{vv}, v{vv}, v{vv} quad_perm:[2,3,0,1] row_mask:0xf bank_mask:0xf")
    e("s_nop 1"); e(f"v_add_f32_dpp v{vv}, v{vv}, v{vv} row_half_mirror row_mask:0xf bank_mask:0xf")
e(f"v_lshlrev_b32 v{TT}, 5, v3")
e(f"ds_bpermute_b32 v{TT+2}, v{TT}, v{TT+2}"); e(f"ds_bpermute_b32 v{TT+3}, v{TT}, v{TT+3}"); e("s_waitcnt lgkmcnt(0)")
stats_finish(TT+2,TT+3,6,7,TT)
def p2_n(t):
    for d in range(4):
        r_=AF+4*t+d
        unpack(r_,TT,TT+1)
        e(f"v_sub_f32 v{TT}, v{TT}, v6"); e(f"v_sub_f32 v{TT+1}, v{TT+1}, v6"); round_pair(TT,TT+1,TT+2)
        e(f"v_mul_f32 v{TT}, v{TT}, v7"); e(f"v_mul_f32 v{TT+1}, v{TT+1}, v7")
        e(f"v_cvt_pk_bf16_f32 v{r_}, v{TT}, v{TT+1}")
p2_n(0); p2_n(1); guard3(lambda: p2_n(2))
get_nonce(TT)
stamp(2)
SA=20; CA=44
mk_vt(7)
e("s_lshl_b32 s56, s3, 11"); e("s_add_u32 s57, s56, 8192"); e("s_add_u32 s62, s56, 16384"); e("s_min_u32 s62, s62, %d"%(9*2048))
e("s_add_u32 s63, s56, %d"%(10*2048)); e("s_add_u32 s64, s57, %d"%(10*2048)); e("s_add_u32 s65, s62, %d"%(10*2048))
lp=g.newlab("Lpoll"); g.lab(lp)
for t,sg in enumerate(["s56","s57","s62"]):
    e(f"buffer_load_dwordx4 {vr(SA+8*t)}, v7, s[36:39], {sg} offen sc1"); e(f"buffer_load_dwordx4 {vr(SA+8*t+4)}, v7, s[36:39], {sg} offen offset:16 sc1")
for t,sg in enumerate(["s63","s64","s65"]):
    e(f"buffer_load_dwordx4 {vr(CA+8*t)}, v7, s[36:39], {sg} offen sc1"); e(f"buffer_load_dwordx4 {vr(CA+8*t+4)}, v7, s[36:39], {sg} offen offset:16 sc1")
e("s_waitcnt vmcnt(0)")
tag_check([SA+4*k+1 for k in range(12)])
poll_tail(lp,1)
def p2_h(t):
    for d in range(4):
        r_=AF+4*t+d
        unpack(r_,TT,TT+1)
        unpack(CA+8*t+2*d,6,7)
        e("v_add_f32 v6, 1.0, v6"); e("v_add_f32 v7, 1.0, v7"); round_pair(6,7,TT+2)
        e(f"v_mul_f32 v{TT}, v{TT}, v6"); e(f"v_mul_f32 v{TT+1}, v{TT+1}, v7"); round_pair(TT,TT+1,TT+2)
        unpack(SA+8*t+2*d,6,7)
        e(f"v_add_f32 v{TT}, v{TT}, v6"); e(f"v_add_f32 v{TT+1}, v{TT+1}, v7")
        e(f"v_cvt_pk_bf16_f32 v{r_}, v{TT}, v{TT+1}")
p2_h(0); p2_h(1); guard3(lambda: p2_h(2))
FT2=52
def gemv64_raw2(t):
    for hb in range(2):
        wperm64(WR2+(2*t+hb)*16, FT2); e("s_nop 1"); mfma_kb(FT2, AF+4*t, ACC, hb, t==0)
gemv64_raw2(0); gemv64_raw2(1); guard3(lambda: gemv64_raw2(2))
combine64(ACC, WR2, lambda: e("s_lshl_b32 s56, s3, 12"), LDS_RED)
p_finish(lambda: (e("s_lshl_b32 s56, s69, 11"), e(f"s_add_u32 s56, s56, {WS_Q}")))
g.lab("L_QWAIT")
l=g.newlab("Lqd"); e("s_cmp_lg_u32 s3, 2"); e(f"s_cbranch_scc1 {l}")
e("v_lshrrev_b32 v7, 5, v0"); e("v_lshlrev_b32 v7, 11, v7"); e("v_and_b32 v6, 31, v0"); e("v_lshl_add_u32 v7, v6, 3, v7")
e("s_lshl_b32 s56, s35, 12"); e("s_lshl_b32 s57, s34, 8"); e("s_add_u32 s56, s56, s57"); e(f"s_add_u32 s56, s56, {WS_Q}")
lp=g.newlab("Lpoll"); g.lab(lp)
e("buffer_load_dwordx2 v[8:9], v7, s[36:39], s56 offen sc1")
e("s_waitcnt vmcnt(0)")
e("v_cmp_ne_u32 vcc, s31, v9")
poll_tail(lp,2)
e("v_lshlrev_b32 v7, 2, v0"); e("v_mov_b32 v10, 24"); e("v_mov_b32 v11, 0")
e(f"ds_write_b32 v7, v8 offset:{LDS_Q}")
e(f"ds_write_b32 v11, v10 offset:{LDS_CNT}")
e("s_waitcnt lgkmcnt(0)")
e("v_mov_b32 v10, 1"); e(f"ds_write_b32 v11, v10 offset:{LDS_QRDY}")
g.lab(l)
stamp(3)
sk=g.newlab("Lnoreset"); e("s_cmp_lg_u32 s3, 3"); e(f"s_cbranch_scc1 {sk}")
for k in range(4): e(f"v_mov_b32 v{8+k}, -1")
e("v_lshlrev_b32 v12, 2, v0"); e("v_lshlrev_b32 v13, 3, v0"); e("v_lshlrev_b32 v14, 4, v0")
e("s_lshl_b32 s56, s35, 3"); e("s_add_u32 s56, s56, s34"); e("s_lshl_b32 s56, s56, 8"); e(f"s_add_u32 s56, s56, {WS_O}")
e("buffer_store_dword v8, v12, s[36:39], s56 offen sc1")
l2=g.newlab("Lr"); e(f"s_sub_u32 s56, s2, {E2B}"); e("s_cmp_ge_u32 s56, 27"); e(f"s_cbranch_scc1 {l2}")
e("s_lshl_b32 s56, s56, 10"); e(f"s_add_u32 s56, s56, {WS_H1}")
e("buffer_store_dwordx4 v[8:11], v14, s[36:39], s56 offen sc1")
g.lab(l2)
l2=g.newlab("Lr"); e(f"s_sub_u32 s56, s2, {E3B}"); e("s_cmp_ge_u32 s56, 20"); e(f"s_cbranch_scc1 {l2}")
e("s_lshl_b32 s56, s56, 9"); e(f"s_add_u32 s56, s56, {WS_X1}")
e("buffer_store_dwordx2 v[8:9], v13, s[36:39], s56 offen sc1")
g.lab(l2)
l3=g.newlab("Lr"); e(f"s_sub_u32 s56, s2, {OWB}"); e("s_cmp_ge_u32 s56, 80"); e(f"s_cbranch_scc1 {l3}")
e("s_lshl_b32 s56, s56, 11"); e(f"s_add_u32 s56, s56, {WS_X1P}")
e("buffer_store_dwordx4 v[8:11], v14, s[36:39], s56 offen sc1"); e("buffer_store_dwordx4 v[8:11], v14, s[36:39], s56 offen offset:1024 sc1")
g.lab(l3)
e("s_waitcnt vmcnt(0)")
e("v_mov_b32 v9, 0"); e("v_mov_b32 v8, s31"); e("s_lshl_b32 s56, s2, 2"); e(f"s_add_u32 s56, s56, {WS_RDY}")
e("s_mov_b64 s[58:59], exec"); e("s_mov_b64 exec, 1")
e("buffer_store_dword v8, v9, s[36:39], s56 offen sc1")
e("s_mov_b64 exec, s[58:59]")
g.lab(sk)
e(f"s_cmp_ge_u32 s2, {IDB}"); e("s_cbranch_scc1 L_WDONE")
e(f"s_cmp_ge_u32 s2, {E3B}"); e("s_cbranch_scc1 L_W3")
e(f"s_cmp_ge_u32 s2, {E2B}"); e("s_cbranch_scc1 L_W2")
e(f"s_cmp_lt_u32 s2, {OWB}"); e("s_cbranch_scc1 L_WDONE")
g.c("---- owner preload: idx=wg-OWB ; k8=idx/10, n10=idx%10 ; wave w: head 4k8+w -> rows 512k8+128w")
e(f"s_sub_u32 s69, s2, {OWB}"); e("s_mul_hi_u32 s66, s69, %d"%((1<<32)//10+1)); e("s_mul_i32 s67, s66, 10"); e("s_sub_u32 s67, s69, s67")
e("s_lshl_b32 s56, s67, 7"); e("s_add_u32 s44, s16, s56"); e("s_addc_u32 s45, s17, 0"); e("s_sub_u32 s46, %d, s56"%(4096*1280)); e("s_mov_b32 s47, 0x20000")
wlane(1280)
def own_pair(t): e("s_lshl_b32 s56, s66, 3"); e("s_lshl_b32 s57, s3, 1"); e("s_add_u32 s56, s56, s57"); e(f"s_add_u32 s56, s56, {t}"); e(f"s_mul_i32 s56, s56, {64*1280}")
wload64(2,1280,104,own_pair)
e("s_waitcnt vmcnt(0)")
for kb in range(4): wperm64(104+16*kb, 40+16*kb)
poll_rdy_all(8)
e("s_branch L_WDONE")
g.lab("L_W2")
def e2_preload():
    e(f"s_sub_u32 s57, s2, {E2B}"); e("s_lshl_b32 s56, s57, 7"); e("s_add_u32 s44, s20, s56"); e("s_addc_u32 s45, s21, 0"); e("s_sub_u32 s46, %d, s56"%(640*3456)); e("s_mov_b32 s47, 0x20000")
    wlane(3456)
    def pr(t): e(f"s_mul_i32 s56, s68, {64*3456}")
    wload64(1,3456,8,pr)
    mk_vt(7)
    e("s_lshl_b32 s56, s68, 11")
    lp=g.newlab("Lpoll"); g.lab(lp)
    for q_,pb in enumerate([30,40]):
        e(f"s_add_u32 s57, s56, {pb*2048}"); e(f"buffer_load_dwordx4 {vr(72+8*q_)}, v7, s[36:39], s57 offen sc1"); e(f"buffer_load_dwordx4 {vr(72+8*q_+4)}, v7, s[36:39], s57 offen offset:16 sc1")
    e("s_waitcnt vmcnt(0)")
    tag_check([73+4*k for k in range(4)])
    poll_tail(lp,100)
    wperm64(8,40); wperm64(24,56)
    for d in range(4):
        unpack(72+2*d,100+2*d,101+2*d)
        unpack(80+2*d,108+2*d,109+2*d)
        e(f"v_add_f32 v{108+2*d}, 1.0, v{108+2*d}"); e(f"v_add_f32 v{109+2*d}, 1.0, v{109+2*d}"); round_pair(108+2*d,109+2*d,8)
    mk_vx1(4)
def e2_work():
    idle=g.newlab("Le2idle"); idle2=g.newlab("Le2idle")
    e("s_cmp_ge_u32 s68, 10"); e(f"s_cbranch_scc1 {idle}")
    e("s_lshl_b32 s56, s68, 10"); e(f"s_add_u32 s56, s56, {WS_X1}")
    lp=g.newlab("Lpoll"); g.lab(lp)
    e("buffer_load_dwordx4 v[16:19], v4, s[36:39], s56 offen sc1")
    e("s_waitcnt vmcnt(0)")
    sentinel_check([16,17,18,19])
    poll_tail(lp,0)
    stamp(6)
    for d in range(4): unpack(16+d,8+2*d,9+2*d)
    e("v_add_f32 v32, v8, v9"); e("v_mul_f32 v33, v8, v8"); e("v_fmac_f32 v33, v9, v9")
    for d in range(1,4):
        a=8+2*d; b=a+1
        e(f"v_add_f32 v32, v32, v{a}"); e(f"v_fmac_f32 v33, v{a}, v{a}"); e(f"v_add_f32 v32, v32, v{b}"); e(f"v_fmac_f32 v33, v{b}, v{b}")
    xor_reduce_add_345(32,34); xor_reduce_add_345(33,34)
    e("v_lshlrev_b32 v7, 3, v3"); e("s_lshl_b32 s56, s68, 6"); e("v_add_u32 v7, s56, v7")
    e(f"ds_write_b64 v7, v[32:33] offset:{LDS_ST2}")
    e("s_waitcnt lgkmcnt(0)")
    g.lab(idle)
    e("s_barrier")
    stamp(7)
    e("s_cmp_ge_u32 s68, 10"); e(f"s_cbranch_scc1 {idle2}")
    e("v_lshlrev_b32 v7, 3, v3")
    for w in range(10): e(f"ds_read_b64 {vr(116+2*w,2)}, v7 offset:{LDS_ST2+64*w}")
    e("s_waitcnt lgkmcnt(0)")
    for w in range(5): e(f"v_add_f32 v{116+4*w}, v{116+4*w}, v{118+4*w}"); e(f"v_add_f32 v{117+4*w}, v{117+4*w}, v{119+4*w}")
    e("v_add_f32 v116, v116, v120"); e("v_add_f32 v117, v117, v121"); e("v_add_f32 v124, v124, v128"); e("v_add_f32 v125, v125, v129")
    e("v_add_f32 v116, v116, v124"); e("v_add_f32 v117, v117, v125"); e("v_add_f32 v32, v116, v132"); e("v_add_f32 v33, v117, v133")
    stats_finish(32,33,36,37,34)
    for d in range(4):
        a=8+2*d; b=a+1
        e(f"v_sub_f32 v{a}, v{a}, v36"); e(f"v_sub_f32 v{b}, v{b}, v36"); round_pair(a,b,34)
        e(f"v_mul_f32 v{a}, v{a}, v37"); e(f"v_mul_f32 v{b}, v{b}, v37"); round_pair(a,b,34)
        e(f"v_mul_f32 v{a}, v{a}, v{108+2*d}"); e(f"v_mul_f32 v{b}, v{b}, v{109+2*d}"); round_pair(a,b,34)
        e(f"v_add_f32 v{a}, v{a}, v{100+2*d}"); e(f"v_add_f32 v{b}, v{b}, v{101+2*d}")
        e(f"v_cvt_pk_bf16_f32 v{16+d}, v{a}, v{b}")
    e("s_nop 1")
    mfma_kb(40,16,116,0,True); mfma_kb(56,16,116,1,True)
    combine64(116, 8, lambda: e("s_lshl_b32 s56, s68, 12"), LDS_ACC)
    g.lab(idle2)
    e("s_barrier")
    stamp(8)
    e("s_cmp_ge_u32 s68, 4"); e("s_cbranch_scc1 L_END")
    e("v_lshlrev_b32 v6, 3, v0"); e("s_lshl_b32 s56, s68, 9"); e("v_add_u32 v6, s56, v6")
    for k in range(20): e(f"ds_read_b64 {vr(40+2*k,2)}, v6 offset:{LDS_ACC+2048*k}")
    e("s_waitcnt lgkmcnt(0)")
    regs=[40+2*k for k in range(20)]
    while len(regs)>1:
        nr=[]
        for i in range(0,len(regs)-1,2):
            for c in range(2): e(f"v_add_f32 v{regs[i]+c}, v{regs[i]+c}, v{regs[i+1]+c}")
            nr.append(regs[i])
        if len(regs)%2: nr.append(regs[-1])
        regs=nr
    round_pair(40,41,12)
    silu_pair(40,41,12,13)
    e("v_cvt_pk_bf16_f32 v8, v40, v41"); e("v_min_u32 v8, 0xfffeffff, v8")
    e("v_lshlrev_b32 v6, 2, v0"); e(f"s_sub_u32 s56, s2, {E2B}"); e("s_lshl_b32 s56, s56, 10"); e("s_lshl_b32 s57, s68, 8"); e("s_add_u32 s56, s56, s57"); e(f"s_add_u32 s56, s56, {WS_H1}")
    e("buffer_store_dword v8, v6, s[36:39], s56 offen sc1")
    e("s_branch L_END")
e("s_mov_b32 s68, s3")
e2_preload()
poll_rdy_all(152)
l=g.newlab("Lz"); e("s_cmp_lg_u32 s3, 3"); e(f"s_cbranch_scc1 {l}")
e("v_mov_b32 v8, s31"); e("v_mov_b32 v6, 0"); e(f"ds_write_b32 v6, v8 offset:{LDS_NONCE}")
e("s_waitcnt lgkmcnt(0)")
g.lab(l)
e("s_branch L_WDONE")
g.lab("L_W3")
e(f"s_sub_u32 s57, s2, {E3B}"); e("s_lshl_b32 s56, s57, 6"); e("s_add_u32 s44, s22, s56"); e("s_addc_u32 s45, s23, 0"); e("s_sub_u32 s46, %d, s56"%(1728*1280)); e("s_mov_b32 s47, 0x20000")
e("s_movk_i32 s57, %d"%(8*1280)); e("v_mul_lo_u32 v5, v1, s57"); e("v_lshl_add_u32 v5, v2, 2, v5")
W3=40
def wperm32(ld, fr):
    for u in range(4):
        e(f"v_perm_b32 v{fr+u}, v{ld+4+u}, v{ld+u}, s60"); e(f"v_perm_b32 v{fr+4+u}, v{ld+4+u}, v{ld+u}, s61")
for t2 in range(4):
    ts=[t for t in (2*t2,2*t2+1) if t<7]
    for ti,t in enumerate(ts):
        sk=None
        if t==6: sk=g.newlab("Lsk7"); g_w3(sk)
        e(f"s_add_u32 s56, s3, {4*t}"); e(f"s_mul_i32 s56, s56, {64*1280}")
        for hb in range(2):
            for i in range(8):
                e(f"buffer_load_dword v{8+ti*16+hb*8+(i>>1)+4*(i&1)}, v5, s[44:47], s56 offen {WNT}")
                e(f"s_add_u32 s56, s56, {1280 if i<7 else 1280*25}")
        if sk: g.lab(sk)
    e("s_waitcnt vmcnt(0)")
    for ti,t in enumerate(ts):
        sk=None
        if t==6: sk=g.newlab("Lsk7"); g_w3(sk)
        wperm32(8+ti*16, W3+16*t); wperm32(8+ti*16+8, W3+16*t+8)
        if sk: g.lab(sk)
poll_rdy_all(8)
e("s_cmp_lg_u32 s3, 3"); e("s_cbranch_scc1 L_WDONE")
srd(48,8,8*640*2)
e("v_lshrrev_b32 v6, 3, v0"); e("v_and_b32 v7, 7, v0"); e("v_lshlrev_b32 v7, 3, v7")
e("s_movk_i32 s57, 1280"); e("v_mul_lo_u32 v8, v6, s57"); e("v_add_u32 v8, v8, v7")
e(f"s_sub_u32 s57, s2, {E3B}"); e("s_lshl_b32 s56, s57, 6")
e("buffer_load_dwordx2 v[144:145], v8, s[48:51], s56 offen")
e("v_lshlrev_b32 v9, 8, v6"); e("v_lshl_add_u32 v9, v7, 1, v9")
e("s_lshr_b32 s56, s57, 1"); e("s_lshl_b32 s56, s56, 11"); e("s_and_b32 s57, s57, 1"); e("s_lshl_b32 s57, s57, 7"); e("s_add_u32 s56, s56, s57")
e(f"s_add_u32 s57, s56, {20*2048}"); e(f"s_add_u32 s56, s56, {50*2048}")
lp=g.newlab("Lpoll"); g.lab(lp)
e("buffer_load_dwordx4 v[136:139], v9, s[36:39], s57 offen sc1"); e("buffer_load_dwordx4 v[140:143], v9, s[36:39], s56 offen sc1")
e("s_waitcnt vmcnt(0)")
tag_check([137,141])
poll_tail(lp,100)
e("v_mov_b32 v146, v136"); e("v_mov_b32 v147, v138"); e("v_mov_b32 v148, v140"); e("v_mov_b32 v149, v142")
g.lab("L_WDONE")
stamp(4)
e("s_barrier")
stamp(5)
g.c("---- merge partials (wave 0)")
l=g.newlab("Lmd"); e("s_cmp_lg_u32 s3, 0"); e(f"s_cbranch_scc1 {l}")
M=8
e("v_lshlrev_b32 v6, 3, v0"); e("v_mov_b32 v7, 0")
for w in range(8): e(f"ds_read_b64 {vr(M+2*w,2)}, v6 offset:{LDS_PART+512*w}")
for k in range(4): e(f"ds_read_b128 {vr(24+4*k)}, v7 offset:{LDS_ML+16*k}")
e("s_waitcnt lgkmcnt(0)")
e("v_max3_f32 v6, v24, v26, v28"); e("v_max3_f32 v6, v6, v30, v32"); e("v_max3_f32 v6, v6, v34, v36"); e("v_max_f32 v6, v6, v38")
e(f"s_mov_b32 s57, 0x{f2u(C1):x}")
for w in range(8): m=24+2*w; e(f"v_sub_f32 v{m}, v{m}, v6")
for w in range(8): m=24+2*w; e(f"v_mul_f32 v{m}, s57, v{m}")
for w in range(8): m=24+2*w; e(f"v_exp_f32 v{m}, v{m}")
e("s_nop 0")
e("v_mul_f32 v7, v24, v25"); e("v_mul_f32 v156, v8, v24"); e("v_mul_f32 v157, v9, v24")
for w in range(1,8):
    m=24+2*w; e(f"v_fmac_f32 v7, v{m}, v{m+1}"); e(f"v_fmac_f32 v156, v{M+2*w}, v{m}"); e(f"v_fmac_f32 v157, v{M+2*w+1}, v{m}")
e("v_rcp_f32 v7, v7"); e("s_nop 0"); e("v_mul_f32 v156, v156, v7"); e("v_mul_f32 v157, v157, v7")
e("v_cvt_pk_bf16_f32 v156, v156, v157"); e("v_min_u32 v156, 0xfffeffff, v156")
e("s_lshl_b32 s56, s35, 3"); e("s_add_u32 s56, s56, s34"); e("s_lshl_b32 s56, s56, 8"); e(f"s_add_u32 s56, s56, {WS_O}")
e("v_lshlrev_b32 v6, 2, v0")
e("buffer_store_dword v156, v6, s[36:39], s56 offen sc1")
g.lab(l)
e(f"s_cmp_ge_u32 s2, {IDB}"); e("s_cbranch_scc1 L_END")
e(f"s_cmp_ge_u32 s2, {E3B}"); e("s_cbranch_scc1 L_E3")
e(f"s_cmp_ge_u32 s2, {E2B}"); e("s_cbranch_scc1 L_E2")
e(f"s_cmp_lt_u32 s2, {OWB}"); e("s_cbranch_scc1 L_END")
g.c("---- owner: gather o head 4k8+w (2 pairs)")
mk_vak(7); e("v_lshl_add_u32 v6, v3, 8, v7")
e("s_lshl_b32 s56, s66, 2"); e("s_add_u32 s56, s56, s3"); e("s_lshl_b32 s56, s56, 11"); e(f"s_add_u32 s56, s56, {WS_O}")
lp=g.newlab("Lpoll"); g.lab(lp)
for t in range(2): e(f"buffer_load_dwordx4 {vr(8+4*t)}, v6, s[36:39], s56 offen offset:{128*t} sc1")
e("s_waitcnt vmcnt(0)")
sentinel_check(list(range(8,16)))
poll_tail(lp,0)
stamp(6)
for t in range(2):
    for hb in range(2): mfma_kb(40+16*(2*t+hb), 8+4*t, 104, hb, t==0)
combine64(104, 136, lambda: e("s_lshl_b32 s56, s3, 12"), LDS_RED)
e("s_barrier")
e("s_cmp_ge_u32 s3, 2"); e("s_cbranch_scc1 L_END")
final_sum64(8, 20, 8, LDS_RED, "s3")
for k in range(4): e(f"v_min_u32 v{8+k}, 0xfffeffff, v{8+k}")
e("s_lshl_b32 s56, s69, 11"); e(f"s_add_u32 s56, s56, {WS_X1P}")
e("buffer_store_dwordx4 v[8:11], v6, s[36:39], s56 offen sc1")
e("s_branch L_END")
g.lab("L_E2")
e2_work()
g.lab("L_E3")
g.c("---- E3")
l=g.newlab("Lfin"); e("s_cmp_lg_u32 s3, 3"); e(f"s_cbranch_scc1 {l}")
e("v_lshrrev_b32 v6, 3, v0"); e("v_lshlrev_b32 v6, 8, v6"); e("v_and_b32 v7, 7, v0"); e("v_lshl_add_u32 v6, v7, 4, v6")
e(f"s_sub_u32 s57, s2, {E3B}"); e("s_lshr_b32 s56, s57, 1"); e("s_lshl_b32 s56, s56, 11"); e("s_and_b32 s57, s57, 1"); e("s_lshl_b32 s57, s57, 7"); e("s_add_u32 s56, s56, s57"); e(f"s_add_u32 s56, s56, {WS_X1P}")
for k8 in range(1,8): e(f"s_add_u32 s{61+k8}, s56, {k8*10*2048}")
lp=g.newlab("Lpoll"); g.lab(lp)
for k8 in range(8): e(f"buffer_load_dwordx4 {vr(8+4*k8)}, v6, s[36:39], {'s56' if k8==0 else 's%d'%(61+k8)} offen sc1")
e("s_waitcnt vmcnt(0)")
sentinel_check([8+4*k for k in range(8)])
poll_tail(lp,0)
for c in range(4):
    for k in range(4): e(f"v_add_f32 v{8+8*k+c}, v{8+8*k+c}, v{12+8*k+c}")
    e(f"v_add_f32 v{8+c}, v{8+c}, v{16+c}"); e(f"v_add_f32 v{24+c}, v{24+c}, v{32+c}"); e(f"v_add_f32 v{136+c}, v{8+c}, v{24+c}")
for d in range(2):
    a=136+2*d; b=137+2*d
    round_pair(a,b,24)
    unpack(146+d,25,26); e(f"v_mul_f32 v{a}, v{a}, v25"); e(f"v_mul_f32 v{b}, v{b}, v26"); round_pair(a,b,24)
    unpack(144+d,25,26); e(f"v_add_f32 v{a}, v{a}, v25"); e(f"v_add_f32 v{b}, v{b}, v26")
    e(f"v_cvt_pk_bf16_f32 v{28+d}, v{a}, v{b}"); unpack(28+d,a,b)
e("v_min_u32 v28, 0xfffeffff, v28"); e("v_min_u32 v29, 0xfffeffff, v29")
e("v_lshlrev_b32 v6, 3, v0"); e(f"s_sub_u32 s56, s2, {E3B}"); e("s_lshl_b32 s56, s56, 9"); e(f"s_add_u32 s56, s56, {WS_X1}")
e("buffer_store_dwordx2 v[28:29], v6, s[36:39], s56 offen sc1")
e("s_mov_b32 s61, 0x07060302")
stamp(7)
g.lab(l)
mk_vh(4)
e("s_lshl_b32 s56, s3, 10"); e(f"s_add_u32 s56, s56, {WS_H1}")
e(f"s_add_u32 s57, s3, 24"); e("s_min_u32 s57, s57, 26"); e("s_lshl_b32 s57, s57, 10"); e(f"s_add_u32 s57, s57, {WS_H1}")
e("s_add_u32 s62, s56, 4096"); e("s_add_u32 s63, s56, 8192"); e("s_add_u32 s64, s56, 12288"); e("s_add_u32 s65, s56, 16384"); e("s_add_u32 s66, s56, 20480")
lp=g.newlab("Lpoll"); g.lab(lp)
for t,sg in enumerate(["s56","s62","s63","s64","s65","s66","s57"]): e(f"buffer_load_dwordx4 {vr(8+4*t)}, v4, s[36:39], {sg} offen sc1")
e("s_waitcnt vmcnt(0)")
sentinel_check(list(range(8,36)))
poll_tail(lp,0)
stamp(6)
A3=152
for t in range(7):
    sk=None
    if t==6: sk=g.newlab("Lsk7"); g_w3(sk)
    for hb in range(2):
        for j in range(2):
            a=A3+(hb*2+j)*4
            e(f"v_mfma_f32_16x16x32_bf16 {vr(a)}, {vr(8+4*t)}, {vr(W3+16*t+8*hb+4*j)}, {'0' if t==0 else vr(a)}")
    if sk: g.lab(sk)
e("v_lshrrev_b32 v6, 1, v1"); e("v_lshlrev_b32 v6, 10, v6"); e("v_and_b32 v7, 1, v1"); e("v_lshl_add_u32 v6, v7, 9, v6"); e("v_lshl_add_u32 v6, v2, 3, v6")
e("s_lshl_b32 s56, s3, 11"); e("v_add_u32 v6, s56, v6")
e("s_mov_b32 s58, 0"); e("s_mov_b32 s59, -1"); e("s_nop 3")
for c in range(4):
    e(f"v_cndmask_b32 v{56+2*c}, v{A3+c}, v{A3+8+c}, s[58:59]"); e(f"v_cndmask_b32 v{57+2*c}, v{A3+4+c}, v{A3+12+c}, s[58:59]")
for c in range(4): e(f"ds_write_b64 v6, {vr(56+2*c,2)} offset:{LDS_RED+128*c}")
e("s_waitcnt lgkmcnt(0)")
e("s_barrier")
e("s_cmp_lg_u32 s3, 3"); e("s_cbranch_scc1 L_END")
e("v_lshlrev_b32 v6, 4, v0")
for k in range(8): e(f"ds_read_b128 {vr(8+4*k)}, v6 offset:{LDS_RED+1024*k}")
e("s_waitcnt lgkmcnt(0)")
for c in range(4):
    for k in range(4): e(f"v_add_f32 v{8+8*k+c}, v{8+8*k+c}, v{12+8*k+c}")
    e(f"v_add_f32 v{8+c}, v{8+c}, v{16+c}"); e(f"v_add_f32 v{24+c}, v{24+c}, v{32+c}"); e(f"v_add_f32 v{64+c}, v{8+c}, v{24+c}")
for d in range(2):
    a=136+2*d; b=137+2*d
    r0=64+2*d; r1=65+2*d
    round_pair(r0,r1,70)
    unpack(148+d,71,72); e(f"v_mul_f32 v{r0}, v{r0}, v71"); e(f"v_mul_f32 v{r1}, v{r1}, v72"); round_pair(r0,r1,70)
    e(f"v_add_f32 v{a}, v{a}, v{r0}"); e(f"v_add_f32 v{b}, v{b}, v{r1}")
    e(f"v_cvt_pk_bf16_f32 v{74+d}, v{a}, v{b}")
srd(48,28,8*640*2)
e("v_lshrrev_b32 v6, 3, v0"); e("s_movk_i32 s57, 1280"); e("v_mul_lo_u32 v6, v6, s57"); e("v_and_b32 v7, 7, v0"); e("v_lshl_add_u32 v6, v7, 3, v6")
e(f"s_sub_u32 s56, s2, {E3B}"); e("s_lshl_b32 s56, s56, 6")
e("buffer_store_dwordx2 v[74:75], v6, s[48:51], s56 offen")
e("s_branch L_END")
g.lab("L_STREAM")
g.c("================ streaming waves")
e("s_setprio 2")
e("s_sub_u32 s3, s3, 4")
e("v_lshlrev_b32 v4, 8, v2"); e("v_lshl_add_u32 v4, v1, 4, v4")
e("v_lshlrev_b32 v1, 10, v1"); e("v_lshl_add_u32 v1, v2, 4, v1")
e("v_mov_b32 v0, v4")
e("s_waitcnt lgkmcnt(0)")
e("s_lshl_b32 s56, s78, 20"); e("s_lshr_b32 s57, s78, 12")
NREC = "0" if "nostream" in OPT else "0x100000"
e("s_add_u32 s36, s10, s56"); e("s_addc_u32 s37, s11, s57"); e(f"s_mov_b32 s38, {NREC}"); e("s_mov_b32 s39, 0x20000")
e("s_add_u32 s40, s12, s56"); e("s_addc_u32 s41, s13, s57"); e(f"s_mov_b32 s42, {NREC}"); e("s_mov_b32 s43, 0x20000")
U=[40,72,104,136]
NTF=OPT.get("kvf","nt").replace("_"," ").replace("none","")
def kload(ub, so, win=0, bar=False):
    e(f"s_add_u32 s46, {so}, 4096")
    for j in range(8):
        if bar and j==2: e("s_barrier")
        if win: e(f"s_waitcnt vmcnt({win-1})")
        e(f"buffer_load_dwordx4 {vr(ub+4*j)}, v0, s[36:39], {so if j<4 else 's46'} offen offset:{64*(j&3)} {NTF}")
def vload(ub, so, win=0):
    e(f"s_add_u32 s46, {so}, 4096")
    for i in range(8):
        if win: e(f"s_waitcnt vmcnt({win-1})")
        e(f"buffer_load_dwordx4 {vr(ub+4*i)}, v1, s[40:43], {so if i<4 else 's46'} offen offset:{256*(i&3)} {NTF}")
e("s_lshl_b32 s44, s3, 13"); e("s_add_u32 s45, s44, 65536"); e("s_add_u32 s47, s44, 131072")
e(f"s_lshl_b32 s54, s3, 14"); e(f"s_add_u32 s54, s54, {LDS_PF}")
def kload_lds(so, win):
    e(f"s_add_u32 s46, {so}, 4096")
    for j in range(8):
        e(f"s_add_u32 m0, s54, {1024*j-64*(j&3)}")
        e(f"s_waitcnt vmcnt({win-1})" if win else "s_nop 0")
        e(f"buffer_load_dwordx4 v0, s[36:39], {so if j<4 else 's46'} offen offset:{64*(j&3)} {NTF} lds")
def vload_lds(so, win):
    e(f"s_add_u32 s46, {so}, 4096")
    for i in range(8):
        e(f"s_add_u32 m0, s54, {8192+1024*i-256*(i&3)}")
        e(f"s_waitcnt vmcnt({win-1})" if win else "s_nop 0")
        e(f"buffer_load_dwordx4 v1, s[40:43], {so if i<4 else 's46'} offen offset:{256*(i&3)} {NTF} lds")
kload(U[0],"s44",WIN,bar=True); vload(U[1],"s44",WIN); kload_lds("s47",WIN); vload_lds("s47",WIN); kload(U[2],"s45",WIN); vload(U[3],"s45",WIN)
for j in range(8):
    m=(0x0001000100010001<<j)
    e(f"s_mov_b32 s{62+2*j}, 0x{m&0xffffffff:x}"); e(f"s_mov_b32 s{63+2*j}, 0x{m>>32:x}")
e("s_mov_b32 s60, 0x05040100"); e("s_mov_b32 s61, 0x07060302")
e(f"s_mov_b32 s52, 0x{f2u(C1):x}"); e("s_mov_b32 s53, 0x3f803f80")
e("s_mov_b32 s48, 0xff800000"); e("s_mov_b32 s49, 0")
for k in range(4): e(f"v_mov_b32 v{4+k}, 0")
e("v_mov_b32 v2, 0")
stamp(1)
e("v_mov_b32 v16, 0")
lq=g.newlab("Lqr"); g.lab(lq)
e(f"ds_read_b32 v17, v16 offset:{LDS_QRDY}"); e("s_waitcnt lgkmcnt(0)"); e("v_readfirstlane_b32 s56, v17"); e("s_nop 1"); e("s_cmp_lg_u32 s56, 0")
ld=g.newlab("Lqd"); e(f"s_cbranch_scc1 {ld}"); e("s_sleep 2"); e(f"s_branch {lq}"); g.lab(ld)
stamp(3)
e("v_mbcnt_lo_u32_b32 v16, -1, 0"); e("v_mbcnt_hi_u32_b32 v16, -1, v16"); e("v_lshrrev_b32 v16, 4, v16"); e("v_lshlrev_b32 v16, 4, v16")
for j in range(4): e(f"ds_read_b128 {vr(24+4*j)}, v16 offset:{LDS_Q+64*j}")
def grab():
    e(f"v_mov_b32 v16, {LDS_CNT}"); e("v_mov_b32 v17, 1")
    e("s_mov_b64 exec, 1"); e("ds_add_rtn_u32 v3, v16, v17"); e("s_mov_b64 exec, -1")
e("s_setprio 0")
grab()
rare=[]
def lds_addr(d):
    e(f"v_mbcnt_lo_u32_b32 v{d}, -1, 0"); e(f"v_mbcnt_hi_u32_b32 v{d}, -1, v{d}"); e(f"v_lshlrev_b32 v{d}, 4, v{d}"); e(f"v_add_u32 v{d}, s54, v{d}")
def tile(KB,VB,idx,sl,kw="vmcnt(24) lgkmcnt(0)",vw="vmcnt(24)",mode="global",check=True):
    if check: e(f"s_cmp_ge_u32 {sl}, 0x100000"); e("s_cbranch_scc1 L_LOOPEND")
    e(f"s_waitcnt {kw}")
    for j in range(4):
        e(f"v_mfma_f32_16x16x32_bf16 v[8:11], {vr(KB+4*j)}, {vr(24+4*j)}, {'0' if j==0 else 'v[8:11]'}")
        e(f"v_mfma_f32_16x16x32_bf16 v[12:15], {vr(KB+16+4*j)}, {vr(24+4*j)}, {'0' if j==0 else 'v[12:15]'}")
        if j==0 and mode=="global": e(f"v_readfirstlane_b32 {sl}, v3")
    if mode=="global":
        e(f"s_lshl_b32 {sl}, {sl}, 13")
        kload(KB, sl)
        grab()
    else:
        lds_addr(16)
        e("s_waitcnt vmcnt(24)")
        for j in range(8): e(f"ds_read_b128 {vr(KB+4*j)}, v16 offset:{1024*j}")
    if "nocomp" in OPT and mode=="global":
        e("s_waitcnt vmcnt(24)"); vload(VB, sl); return
    e("v_max3_f32 v17, v8, v9, v10"); e("v_max3_f32 v17, v17, v11, v12"); e("v_max3_f32 v17, v17, v13, v14"); e("v_max_f32 v17, v17, v15")
    e("v_cmp_lt_f32 vcc, s48, v17")
    e(f"s_cbranch_vccnz L_RARE{idx}")
    g.lab(f"L_CONT{idx}")
    e("v_mov_b32 v16, s49")
    for k in range(8): e(f"v_fma_f32 v{8+k}, v{8+k}, s52, v16")
    for k in range(8): e(f"v_exp_f32 v{8+k}, v{8+k}")
    for u in range(4): e(f"v_cvt_pk_bf16_f32 v{8+u}, v{8+2*u}, v{9+2*u}")
    if vw: e(f"s_waitcnt {vw}")
    def T0(c):
        for u in range(4): e(f"v_perm_b32 v{16+u}, v{VB+8*u+4+c}, v{VB+8*u+c}, s60")
    def T1(c):
        for u in range(4): e(f"v_perm_b32 v{20+u}, v{VB+8*u+4+c}, v{VB+8*u+c}, s61")
    def Am(j):
        for u in range(4): e(f"v_cndmask_b32 v{12+u}, 0, v{8+u}, s[{62+2*j}:{63+2*j}]")
    T0(0)
    for u in range(4): e(f"v_dot2_f32_bf16 v2, v{8+u}, s53, v2")
    for c in range(4):
        Am(2*c); T1(c)
        if c==3 and mode=="global": vload(VB, sl)
        e("v_mfma_f32_16x16x32_bf16 v[4:7], v[12:15], v[16:19], v[4:7]")
        Am(2*c+1)
        if c<3: T0(c+1)
        else: e("s_nop 1")
        e("v_mfma_f32_16x16x32_bf16 v[4:7], v[12:15], v[20:23], v[4:7]")
    if mode=="lds":
        lds_addr(16)
        e("s_waitcnt vmcnt(16)")
        for i in range(8): e(f"ds_read_b128 {vr(VB+4*i)}, v16 offset:{8192+1024*i}")
    rare.append(idx)
tile(U[0],U[1],"a","s44",kw="vmcnt(40) lgkmcnt(0)",vw="vmcnt(24)",mode="lds",check=False)
tile(U[2],U[3],"b","s45",kw="vmcnt(8) lgkmcnt(0)",vw="vmcnt(8)",check=False)
tile(U[0],U[1],"c","s44",kw="lgkmcnt(0)",vw=None,check=False)
g.lab("L_LOOP")
tile(U[2],U[3],1,"s45"); tile(U[0],U[1],0,"s44")
e("s_branch L_LOOP")
g.lab("L_LOOPEND")
e("s_waitcnt lgkmcnt(0)")
stamp(4)
e("s_nop 7"); e("s_nop 3")
e("v_mbcnt_lo_u32_b32 v3, -1, 0"); e("v_mbcnt_hi_u32_b32 v3, -1, v3")
e("v_mov_b32 v17, v2"); e("s_nop 1"); e("v_permlane16_swap_b32 v2, v17"); e("s_nop 1"); e("v_add_f32 v2, v2, v17")
e("v_mov_b32 v17, v2"); e("s_nop 1"); e("v_permlane32_swap_b32 v2, v17"); e("s_nop 1"); e("v_add_f32 v19, v2, v17")
e("v_mov_b32 v18, s48")
e("v_and_b32 v16, 15, v3"); e("v_lshlrev_b32 v16, 5, v16"); e("v_lshrrev_b32 v17, 4, v3"); e("v_lshl_add_u32 v16, v17, 4, v16")
e("s_lshl_b32 s56, s3, 9"); e("v_add_u32 v16, s56, v16")
e("s_lshl_b32 s56, s3, 3"); e("v_mov_b32 v17, s56")
e("s_mov_b32 exec_hi, 0")
e(f"ds_write_b128 v16, v[4:7] offset:{LDS_PART}")
e(f"ds_write_b64 v17, v[18:19] offset:{LDS_ML}")
e("s_mov_b32 exec_hi, -1")
e("s_waitcnt lgkmcnt(0)")
e("s_barrier")
e(f"s_sub_u32 s56, s2, {E2B}"); e("s_cmp_ge_u32 s56, 27"); e("s_cbranch_scc1 L_END")
e("s_waitcnt vmcnt(0)")
e("v_mov_b32 v0, v3"); e("v_lshrrev_b32 v1, 4, v0"); e("v_and_b32 v2, 15, v0"); e("v_and_b32 v3, 7, v2")
e("s_add_u32 s68, s3, 4"); e("s_mov_b32 s30, 0")
srd(36,6,WS_SIZE)
e("v_mov_b32 v6, 0"); e(f"ds_read_b32 v7, v6 offset:{LDS_NONCE}"); e("s_waitcnt lgkmcnt(0)"); e("v_readfirstlane_b32 s31, v7")
e("s_mov_b32 s60, 0x05040100"); e("s_mov_b32 s61, 0x07060302")
l=g.newlab("Lnp"); e("s_cmp_ge_u32 s68, 10"); e(f"s_cbranch_scc1 {l}")
e2_preload()
g.lab(l)
e2_work()
for idx in rare:
    g.lab(f"L_RARE{idx}")
    e("v_mov_b32 v18, v17"); e("s_nop 1"); e("v_permlane16_swap_b32 v17, v18"); e("s_nop 1"); e("v_max_f32 v17, v17, v18")
    e("v_mov_b32 v18, v17"); e("s_nop 1"); e("v_permlane32_swap_b32 v17, v18"); e("s_nop 1"); e("v_max_f32 v17, v17, v18")
    e("v_max_f32 v17, s48, v17")
    e("v_sub_f32 v18, s48, v17"); e("v_mul_f32 v18, s52, v18"); e("v_exp_f32 v18, v18")
    e("v_mul_f32 v19, s52, v17"); e("v_sub_f32 v19, 0, v19")
    e("v_readfirstlane_b32 s48, v17"); e("v_readfirstlane_b32 s49, v19")
    for k in range(4): e(f"v_mul_f32 v{4+k}, v{4+k}, v18")
    e("v_mul_f32 v2, v2, v18")
    e("s_nop 1")
    e(f"s_branch L_CONT{idx}")
g.lab("L_END")
if DEBUG_STAMPS:
    e("s_mov_b64 exec, -1")
    stamp(11)
    e("s_memtime s[92:93]"); e("s_waitcnt lgkmcnt(0)"); e("s_mov_b32 s90, s92")
    if "spin" in OPT: e("s_mov_b32 s90, s30")
    srd(36,6,WS_SIZE)
    e("s_lshl_b32 s94, s2, 10"); e("s_lshl_b32 s95, s79, 6"); e("s_add_u32 s94, s94, s95"); e(f"s_add_u32 s94, s94, {WS_STAMP}")
    e("v_mov_b32 v1, 0")
    for k in range(12): e(f"v_mov_b32 v0, s{30 if (k==8 and 'spin2' in OPT) else 80+k}"); e(f"buffer_store_dword v0, v1, s[36:39], s94 offen offset:{4*k}")
g.lab("L_EXIT")
e("s_endpgm")
g.L.append('.section .rodata,"a"'); g.L.append(".p2align 6"); g.L.append(f".amdhsa_kernel {KNAME}")
for x in ["  .amdhsa_next_free_vgpr 168","  .amdhsa_next_free_sgpr 96","  .amdhsa_accum_offset 168","  .amdhsa_group_segment_fixed_size 0","  .amdhsa_kernarg_size 104","  .amdhsa_user_sgpr_count 2","  .amdhsa_user_sgpr_kernarg_segment_ptr 1","  .amdhsa_system_sgpr_workgroup_id_x 1",".end_amdhsa_kernel"]: g.L.append(x)
open(sys.argv[1],"w").write("\n".join(g.L)+"\n")
```
